```python
import torch

def _softmax(x, axis=-1):
    return torch.softmax(x, dim=axis)
def _gelu(x):
    return torch.nn.functional.gelu(x, approximate="tanh")
def _silu(x):
    return torch.nn.functional.silu(x)
def _sigmoid(x):
    return torch.sigmoid(x)
def _layernorm(x, axis=-1, eps=1e-5):
    m = x.mean(dim=axis, keepdim=True)
    v = x.var(dim=axis, keepdim=True, unbiased=False)
    return (x - m) / torch.sqrt(v + eps)
def _scatter_add(tgt, idx, src, axis=0):
    return tgt.clone().index_add_(axis, idx, src)
def _segment_sum(src, seg, n):
    out = torch.zeros((n,) + src.shape[1:], dtype=src.dtype)
    return out.index_add_(0, seg, src)
def _pad(x, pw):
    flat = tuple(v for pair in reversed(pw) for v in pair)
    return torch.nn.functional.pad(x, flat)

kernel_name = 'parallel_sum__mha_block_cached__geglu_ffn__decode'

def setup_inputs():

    _w = (lambda a: (lambda t: t.to(torch.bfloat16) if t.is_floating_point() else t)(torch.as_tensor(a)))
    def _A_setup():
        B, Sq, D = 1, 1, 576
        H, Sk, Dh = 32, 16384, 128
        return {
            "x": _w((lambda *s: torch.randn(*s, dtype=torch.bfloat16) * 0.05)(B, Sq, D)),
            "k_cache": _w((lambda *s: torch.randn(*s, dtype=torch.bfloat16) * 3.2)(B, H, Sk, Dh)),
            "v_cache": _w((lambda *s: torch.randn(*s, dtype=torch.bfloat16) * 1.6)(B, H, Sk, Dh)),
            "wq": _w((lambda *s: torch.randn(*s, dtype=torch.bfloat16) * 3.2)(D, H * Dh) * (D ** -0.5)),
            "wo": _w((lambda *s: torch.randn(*s, dtype=torch.bfloat16) * 1.6)(H * Dh, D) * ((H * Dh) ** -0.5)),
        }
    _A_in = _A_setup()

    def _B_setup():
        B, S, D, F = 1, 1, 576, 4608
        return {
            "x": _w((lambda *s: torch.randn(*s, dtype=torch.bfloat16) * 0.05)(B, S, D)),
            "w_gate": _w((lambda *s: torch.randn(*s, dtype=torch.bfloat16) * 0.05)(D, F)),
            "w_up": _w((lambda *s: torch.randn(*s, dtype=torch.bfloat16) * 0.05)(D, F)),
            "w_down": _w((lambda *s: torch.randn(*s, dtype=torch.bfloat16) * 0.05)(F, D)),
        }
    _B_in = _B_setup()

    return {
        "A_x": _A_in["x"],
        "A_k_cache": _A_in["k_cache"],
        "A_v_cache": _A_in["v_cache"],
        "A_wq": _A_in["wq"],
        "A_wo": _A_in["wo"],
        "B_x": _B_in["x"],
        "B_w_gate": _B_in["w_gate"],
        "B_w_up": _B_in["w_up"],
        "B_w_down": _B_in["w_down"],
    }

def reference(A_x, A_k_cache, A_v_cache, A_wq, A_wo, B_x, B_w_gate, B_w_up, B_w_down):
    def _A_ref(x, k_cache, v_cache, wq, wo):
        B, Sq, D = x.shape
        H, Dh = 32, 128
        q = (lambda x, *d: x.permute(*d))((x @ wq).reshape(B, Sq, H, Dh), 0, 2, 1, 3)
        scores = torch.einsum("bhqd,bhkd->bhqk", q, k_cache) * (Dh ** -0.5)
        p = _softmax(scores, axis=-1)
        o = torch.einsum("bhqk,bhkd->bhqd", p, v_cache)
        return (lambda x, *d: x.permute(*d))(o, 0, 2, 1, 3).reshape(B, Sq, H * Dh) @ wo

    def _B_ref(x, w_gate, w_up, w_down):
        return (_gelu(x @ w_gate) * (x @ w_up)) @ w_down

    x = A_x
    xn = _layernorm(x, axis=-1)
    return x + _A_ref(xn, A_k_cache, A_v_cache, A_wq, A_wo) + _B_ref(xn, B_w_gate, B_w_up, B_w_down)
```

```python
import sys

NT = True
out = []
def e(s=""):
    out.append(s)
def c(s):
    out.append("    ; " + s)
def i(s):
    out.append("    " + s)

KNAME = "parallel_sum__mha_block_cached__geglu_ffn__decode_kernel"

assert all((t*911)>>16 == t//72 for t in range(512))
assert all((t*3641)>>16 == t//18 for t in range(512))
assert all((W*128*9363)>>16 == (W*128)//7 for W in range(57))
assert all((j*37)>>8 == j//7 for j in range(28))

LOG2E = 0x3fb8aa3b
SCALE = 0x3db504f3
import struct
def f2u(x): return struct.unpack("<I", struct.pack("<f", x))[0]
assert f2u(0.08838834764831845) == SCALE
assert f2u(1.4426950408889634) == LOG2E

L_XN = 0
L_QP = 2560
L_QB = 6656
L_OP = 8704
L_ML = 12800
L_OF = 12928
L_YP = 17408
L_GU = 2560
L_GS = 36096
L_HID = 37248
L_YP2 = 2560
LDS_BYTES = 38912

WS_ML = 0x90000

hdr = """; Kernarg layout for this problem (96 bytes, ptrs only, base s[0:1]):
;   offset   0: d_in[0] A_x  shape=(1, 1, 576) dtype=bfloat16
;   offset   8: d_in[1] A_k_cache  shape=(1, 32, 16384, 128) dtype=bfloat16
;   offset  16: d_in[2] A_v_cache  shape=(1, 32, 16384, 128) dtype=bfloat16
;   offset  24: d_in[3] A_wq  shape=(576, 4096) dtype=bfloat16
;   offset  32: d_in[4] A_wo  shape=(4096, 576) dtype=bfloat16
;   offset  40: d_in[5] B_x  shape=(1, 1, 576) dtype=bfloat16
;   offset  48: d_in[6] B_w_gate  shape=(576, 4608) dtype=bfloat16
;   offset  56: d_in[7] B_w_up  shape=(576, 4608) dtype=bfloat16
;   offset  64: d_in[8] B_w_down  shape=(4608, 576) dtype=bfloat16
;   offset  72: d_out     shape=(1, 1, 576) dtype=bfloat16 (2 bytes/elem)
;   offset  80: d_debug   256 bytes
;   offset  88: d_ws      536870912 bytes workspace
; @launch kernel=%s grid=(256,1,1) block=(512,1,1) lds=%d
; @launch kernel=fin_kernel grid=(36,1,1) block=(256,1,1) lds=2048
.amdgcn_target "amdgcn-amd-amdhsa--gfx950"
.text
""" % (KNAME, LDS_BYTES)
e(hdr.rstrip("\n"))

def allreduce_rows(op, v, tmp):
    i(f"v_mov_b32 v{tmp}, v{v}")
    i("s_nop 1")
    i(f"v_permlane16_swap_b32 v{v}, v{tmp}")
    i("s_nop 1")
    i(f"{op} v{v}, v{v}, v{tmp}")
    i(f"v_mov_b32 v{tmp}, v{v}")
    i("s_nop 1")
    i(f"v_permlane32_swap_b32 v{v}, v{tmp}")
    i("s_nop 1")
    i(f"{op} v{v}, v{v}, v{tmp}")

def allreduce_row16(op, v):
    for r in (8, 4, 2, 1):
        i("s_nop 1")
        i(f"{op}_dpp v{v}, v{v}, v{v} row_ror:{r} row_mask:0xf bank_mask:0xf")

def round_bf16(v, tmp=None):
    i(f"v_cvt_pk_bf16_f32 v{v}, v{v}, v{v}")
    i(f"v_and_b32 v{v}, 0xffff0000, v{v}")

e(f".globl {KNAME}")
e(".p2align 8")
e(f".type {KNAME},@function")
e(f"{KNAME}:")
i("s_cmp_ge_u32 s2, 256")
i("s_cbranch_scc1 L_done")
i("s_load_dwordx16 s[16:31], s[0:1], 0")
i("s_load_dwordx8 s[32:39], s[0:1], 64")
i("v_lshrrev_b32 v1, 6, v0")
i("v_and_b32 v2, 63, v0")
i("s_nop 0")
i("v_readfirstlane_b32 s3, v1")
i("s_and_b32 s4, s2, 7")
i("s_lshr_b32 s5, s2, 3")
i("s_mov_b32 s70, 0x%08x" % LOG2E)
i("s_mov_b32 s71, 0x%08x" % SCALE)
i("s_waitcnt lgkmcnt(0)")
c("SRD x: s[40:43]")
i("s_mov_b32 s40, s16")
i("s_and_b32 s41, s17, 0xffff")
i("s_movk_i32 s42, 1152")
i("s_mov_b32 s43, 0x00020000")
c("SRD ws: s[64:67]")
i("s_mov_b32 s64, s38")
i("s_and_b32 s65, s39, 0xffff")
i("s_mov_b32 s66, 0x100000")
i("s_mov_b32 s67, 0x00020000")
c("x loads")
i("v_lshlrev_b32 v1, 4, v2")
i("v_lshlrev_b32 v3, 1, v2")
i("buffer_load_dwordx4 v[16:19], v1, s[40:43], 0 offen")
i("buffer_load_ushort v20, v3, s[40:43], 0 offen offset:1024")
i("s_cmp_ge_u32 s5, 28")
i("s_cbranch_scc1 L_ffn")

def layernorm(nwait):
    i(f"s_waitcnt vmcnt({nwait})")
    for d in range(4):
        i(f"v_lshlrev_b32 v{22+2*d}, 16, v{16+d}")
        i(f"v_and_b32 v{23+2*d}, 0xffff0000, v{16+d}")
    i("v_lshlrev_b32 v30, 16, v20")
    i("v_add_f32 v31, v22, v23")
    for k in range(24, 31):
        i(f"v_add_f32 v31, v31, v{k}")
    allreduce_row16("v_add_f32", 31)
    i("s_nop 1")
    allreduce_rows("v_add_f32", 31, 32)
    i("v_mul_f32 v31, 0x%08x, v31" % f2u(1.0/576.0))
    i("v_sub_f32 v33, v22, v31")
    i("v_mul_f32 v32, v33, v33")
    for k in range(23, 31):
        i(f"v_sub_f32 v33, v{k}, v31")
        i("v_fmac_f32 v32, v33, v33")
    allreduce_row16("v_add_f32", 32)
    i("s_nop 1")
    allreduce_rows("v_add_f32", 32, 33)
    i("v_mul_f32 v32, 0x%08x, v32" % f2u(1.0/576.0))
    round_bf16(32)
    i("v_add_f32 v32, 0x%08x, v32" % f2u(1e-5))
    round_bf16(32)
    i("v_sqrt_f32 v32, v32")
    i("s_nop 0")
    round_bf16(32)
    i("v_rcp_f32 v33, v32")
    round_bf16(31)
    for k in range(22, 31):
        i(f"v_sub_f32 v{k}, v{k}, v31")
        round_bf16(k)
        i(f"v_mul_f32 v34, v{k}, v33")
        i(f"v_fma_f32 v35, -v34, v32, v{k}")
        i(f"v_fma_f32 v{k}, v35, v33, v34")
        round_bf16(k)
    i("v_lshlrev_b32 v34, 5, v2")
    i(f"ds_write_b128 v34, v[22:25] offset:{L_XN}")
    i(f"ds_write_b128 v34, v[26:29] offset:{L_XN+16}")
    i("v_lshlrev_b32 v34, 2, v2")
    i(f"ds_write_b32 v34, v30 offset:{L_XN+2048}")
    i("v_and_b32 v34, 60, v34")
    i("v_mov_b32 v35, 0")
    i(f"ds_write_b32 v34, v35 offset:{L_XN+2304}")

def proj_rows(nsteps, stg, l_src_addr_v, l_yp, final_row_s):
    for st in range(nsteps):
        i(f"ds_read_b32 v{14+st}, v{l_src_addr_v} offset:{28*st}")
    for a in range(8):
        i(f"v_mov_b32 v{6+a}, 0")
    i("s_waitcnt vmcnt(0) lgkmcnt(0)")
    for st in range(nsteps):
        for d in range(4):
            r = stg + 4*st + d
            i(f"v_lshlrev_b32 v{36+3}, 16, v{r}")
            i(f"v_and_b32 v{r}, 0xffff0000, v{r}")
            i(f"v_fmac_f32 v{6+2*d}, v{14+st}, v39")
            i(f"v_fmac_f32 v{7+2*d}, v{14+st}, v{r}")
    i("v_mul_u32_u24 v39, 2304, v37")
    i("v_lshl_add_u32 v39, v38, 5, v39")
    i(f"ds_write_b128 v39, v[6:9] offset:{l_yp}")
    i(f"ds_write_b128 v39, v[10:13] offset:{l_yp+16}")
    i("s_waitcnt lgkmcnt(0)")
    i("s_barrier")
    i("v_cmp_gt_u32 vcc, 144, v0")
    i("s_nop 1")
    i("s_and_saveexec_b64 s[72:73], vcc")
    i("s_cbranch_execz L_done")
    i("v_lshlrev_b32 v39, 4, v0")
    for r in range(7):
        i(f"ds_read_b128 v[{40+4*r}:{43+4*r}], v39 offset:{l_yp + 2304*r}")
    i("s_waitcnt lgkmcnt(0)")
    for r in range(1, 7):
        for d in range(4):
            i(f"v_add_f32 v{40+d}, v{40+d}, v{40+4*r+d}")
    i(f"buffer_store_dwordx4 v[40:43], v39, s[64:67], s{final_row_s} offen")

def thread_div72():
    i("v_mul_u32_u24 v37, 911, v0")
    i("v_lshrrev_b32 v37, 16, v37")
    i("v_mul_u32_u24 v38, 72, v37")
    i("v_sub_u32 v38, v0, v38")

c("================= attention role =================")
i("s_mul_i32 s6, s5, 37")
i("s_lshr_b32 s6, s6, 8")
i("s_mul_i32 s7, s6, 7")
i("s_sub_u32 s7, s5, s7")
i("s_lshl_b32 s8, s4, 2")
i("s_add_u32 s8, s8, s6")
c("SRD wq: s[52:55]")
i("s_mov_b32 s52, s22")
i("s_and_b32 s53, s23, 0xffff")
i("s_mov_b32 s54, %d" % (576*4096*2))
i("s_mov_b32 s55, 0x00020000")
c("SRD wo: s[56:59], num_records = (h+1)*128*1152")
i("s_mov_b32 s56, s24")
i("s_and_b32 s57, s25, 0xffff")
i("s_add_u32 s58, s8, 1")
i("s_mul_i32 s58, s58, %d" % (128*1152))
i("s_mov_b32 s59, 0x00020000")
c("wave range: W = s*8+w ; start = W*128/7 ; end = (W+1)*128/7  (blocks of 16 keys = 4096 B)")
i("s_lshl_b32 s9, s7, 3")
i("s_add_u32 s9, s9, s3")
i("s_mul_i32 s10, s9, %d" % (128*9363))
i("s_lshr_b32 s10, s10, 16")
i("s_add_u32 s11, s9, 1")
i("s_mul_i32 s11, s11, %d" % (128*9363))
i("s_lshr_b32 s11, s11, 16")
i("s_sub_u32 s12, s11, s10")
i("s_lshl_b32 s13, s10, 12")
c("SRD K: s[44:47], V: s[48:51]; base += h*4MiB ; num_records = end*4096")
i("s_lshl_b32 s14, s8, 22")
i("s_add_u32 s44, s18, s14")
i("s_addc_u32 s45, s19, 0")
i("s_and_b32 s45, s45, 0xffff")
i("s_lshl_b32 s46, s11, 12")
i("s_mov_b32 s47, 0x00020000")
i("s_add_u32 s48, s20, s14")
i("s_addc_u32 s49, s21, 0")
i("s_and_b32 s49, s49, 0xffff")
i("s_mov_b32 s50, s46")
i("s_mov_b32 s51, 0x00020000")
c("wq loads: voffset = (t>>4)*8192 + h*256 + (t&15)*16 ; soffset = st*262144")
i("v_lshrrev_b32 v36, 4, v0")
i("v_lshlrev_b32 v37, 13, v36")
i("v_and_b32 v38, 15, v0")
i("v_lshl_add_u32 v37, v38, 4, v37")
i("s_lshl_b32 s15, s8, 8")
for st in range(18):
    i(f"buffer_load_dwordx4 v[{40+4*st}:{43+4*st}], v37, s[52:55], s15 offen")
    if st < 17:
        i("s_add_u32 s15, s15, 262144")
RB = 116
ntS = " nt" if NT else ""
def ld_k(slot):
    for t in range(4):
        i(f"buffer_load_dwordx4 v[{RB+32*slot+4*t}:{RB+32*slot+4*t+3}], v1, s[44:47], s13 offen offset:{1024*t}{ntS}")
def ld_v(slot):
    for t in range(4):
        i(f"buffer_load_dwordx4 v[{RB+32*slot+16+4*t}:{RB+32*slot+16+4*t+3}], v1, s[48:51], s13 offen offset:{1024*t}{ntS}")
c("K/V prefetch, 4 blocks")
for slot in range(4):
    ld_k(slot); ld_v(slot)
    i("s_add_u32 s13, s13, 4096")
layernorm(50)
c("xn values for this thread: xn[32*st + r], r = t>>4 (v36)")
i("v_lshlrev_b32 v36, 2, v36")
for st in range(18):
    i(f"ds_read_b32 v{14+st}, v36 offset:{L_XN + 128*st}")
for a in range(8):
    i(f"v_mov_b32 v{6+a}, 0")
i("s_waitcnt lgkmcnt(0)")
for st in range(18):
    i(f"s_waitcnt vmcnt({32+17-st})")
    for d in range(4):
        r = 40 + 4*st + d
        i(f"v_lshlrev_b32 v{32+(d&1)}, 16, v{r}")
        i(f"v_and_b32 v{r}, 0xffff0000, v{r}")
        i(f"v_fmac_f32 v{6+2*d}, v{14+st}, v{32+(d&1)}")
        i(f"v_fmac_f32 v{7+2*d}, v{14+st}, v{r}")
c("wo loads into staging (issued now, consumed at the end)")
thread_div72()
i("v_lshlrev_b32 v39, 4, v0")
i("v_cmp_gt_u32 vcc, 504, v0")
i("v_mov_b32 v35, 0x80000000")
i("s_nop 1")
i("v_cndmask_b32 v39, v35, v39, vcc")
i("s_mul_i32 s15, s8, %d" % (128*1152))
for st in range(19):
    i(f"buffer_load_dwordx4 v[{40+4*st}:{43+4*st}], v39, s[56:59], s15 offen")
    if st < 18:
        i("s_add_u32 s15, s15, 8064")
c("reduce q partials across the 4 lane groups, then across waves through LDS")
for a in range(8):
    allreduce_rows("v_add_f32", 6+a, 32)
i("v_lshlrev_b32 v32, 5, v38")
i("v_and_b32 v32, 15, v0")
i("v_lshlrev_b32 v32, 5, v32")
i("s_lshl_b32 s15, s3, 9")
i("v_add_u32 v32, s15, v32")
i(f"ds_write_b128 v32, v[6:9] offset:{L_QP}")
i(f"ds_write_b128 v32, v[10:13] offset:{L_QP+16}")
i("s_waitcnt lgkmcnt(0)")
i("s_barrier")
i("v_lshlrev_b32 v32, 3, v2")
for w in range(8):
    i(f"ds_read_b64 v[{14+2*w}:{15+2*w}], v32 offset:{L_QP + 512*w}")
i("s_waitcnt lgkmcnt(0)")
for w in range(1, 8):
    i(f"v_add_f32 v14, v14, v{14+2*w}")
    i(f"v_add_f32 v15, v15, v{15+2*w}")
i("v_cvt_pk_bf16_f32 v14, v14, v15")
i("s_lshl_b32 s15, s3, 8")
i("v_lshlrev_b32 v32, 2, v2")
i("v_add_u32 v32, s15, v32")
i(f"ds_write_b32 v32, v14 offset:{L_QB}")
i("v_and_b32 v32, 15, v0")
i("v_lshlrev_b32 v32, 4, v32")
i("v_add_u32 v32, s15, v32")
i("s_waitcnt lgkmcnt(0)")
i(f"ds_read_b128 v[2:5], v32 offset:{L_QB}")
for a in range(8):
    i(f"v_mov_b32 v{6+a}, 0")
i("v_mov_b32 v14, 0xff800000")
i("v_mov_b32 v15, 0")
i("s_mov_b32 s74, 0x%08x" % (f2u(-1.4426950408889634)))
i("s_waitcnt lgkmcnt(0)")

def block(slot, wc):
    K = RB + 32*slot
    V = K + 16
    i(f"s_waitcnt vmcnt({wc})")
    for d in range(4):
        for t in range(4):
            src2 = "0" if d == 0 else f"v{16+t}"
            i(f"v_dot2_f32_bf16 v{16+t}, v{K+4*t+d}, v{2+d}, {src2}")
    ld_k(slot)
    for r in (8, 4, 2, 1):
        for t in range(4):
            i(f"v_add_f32_dpp v{16+t}, v{16+t}, v{16+t} row_ror:{r} row_mask:0xf bank_mask:0xf")
    def rnd():
        i("v_cvt_pk_bf16_f32 v24, v16, v17")
        i("v_cvt_pk_bf16_f32 v25, v18, v19")
        i("v_lshlrev_b32 v16, 16, v24")
        i("v_and_b32 v17, 0xffff0000, v24")
        i("v_lshlrev_b32 v18, 16, v25")
        i("v_and_b32 v19, 0xffff0000, v25")
    rnd()
    for t in range(4):
        i(f"v_mul_f32 v{16+t}, s71, v{16+t}")
    rnd()
    i("v_max3_f32 v24, v16, v17, v18")
    i("v_max3_f32 v24, v24, v19, v14")
    i("v_mul_f32 v33, s74, v24")
    i("v_fma_f32 v32, v14, s70, v33")
    for t in range(4):
        i(f"v_fma_f32 v{20+t}, v{16+t}, s70, v33")
    i("v_exp_f32 v32, v32")
    for t in range(4):
        i(f"v_exp_f32 v{20+t}, v{20+t}")
    i("v_mov_b32 v14, v24")
    i("v_fma_f32 v15, v15, v32, v20")
    i("v_add_f32 v24, v21, v22")
    i("v_add_f32 v15, v15, v23")
    i("v_add_f32 v15, v15, v24")
    for a in range(8):
        i(f"v_mul_f32 v{6+a}, v{6+a}, v32")
    i(f"s_waitcnt vmcnt({wc})")
    for t in range(4):
        for d in range(4):
            u = 24 + 2*(d & 1)
            i(f"v_lshlrev_b32 v{u}, 16, v{V+4*t+d}")
            i(f"v_and_b32 v{u+1}, 0xffff0000, v{V+4*t+d}")
            i(f"v_fmac_f32 v{6+2*d}, v{20+t}, v{u}")
            i(f"v_fmac_f32 v{7+2*d}, v{20+t}, v{u+1}")
    ld_v(slot)
    i("s_add_u32 s13, s13, 4096")

c("first round (wo loads still interleaved in the vmcnt order)")
for slot in range(4):
    block(slot, 47)
i("s_sub_u32 s12, s12, 4")
e("L_loop:")
for slot in range(4):
    block(slot, 28)
    i("s_sub_u32 s12, s12, 1")
    i("s_cmp_eq_u32 s12, 0")
    if slot < 3:
        i("s_cbranch_scc1 L_loop_done")
    else:
        i("s_cbranch_scc0 L_loop")
e("L_loop_done:")
i("s_waitcnt vmcnt(0)")
c("merge the 4 lane groups of this wave")
i("v_mov_b32 v16, v14")
allreduce_rows("v_max_f32", 16, 32)
i("v_sub_f32 v17, v14, v16")
i("v_mul_f32 v17, s70, v17")
i("v_exp_f32 v17, v17")
i("s_nop 0")
i("v_mul_f32 v15, v15, v17")
for a in range(8):
    i(f"v_mul_f32 v{6+a}, v{6+a}, v17")
allreduce_rows("v_add_f32", 15, 32)
for a in range(8):
    allreduce_rows("v_add_f32", 6+a, 32)
i("v_and_b32 v32, 15, v0")
i("v_lshlrev_b32 v32, 5, v32")
i("s_lshl_b32 s15, s3, 9")
i("v_add_u32 v32, s15, v32")
i(f"ds_write_b128 v32, v[6:9] offset:{L_OP}")
i(f"ds_write_b128 v32, v[10:13] offset:{L_OP+16}")
i("s_lshl_b32 s15, s3, 3")
i("v_mov_b32 v32, s15")
i("v_mov_b32 v17, v15")
i(f"ds_write_b64 v32, v[16:17] offset:{L_ML}")
i("s_waitcnt lgkmcnt(0)")
i("s_barrier")
c("every wave: combine 8 waves -> o~[128] into its own LDS area")
i("v_mov_b32 v32, 0")
for w in range(8):
    i(f"ds_read_b64 v[{16+2*w}:{17+2*w}], v32 offset:{L_ML+8*w}")
i("v_and_b32 v2, 63, v0")
i("v_lshlrev_b32 v33, 3, v2")
for w in range(8):
    i(f"ds_read_b64 v[{116+2*w}:{117+2*w}], v33 offset:{L_OP+512*w}")
i("s_waitcnt lgkmcnt(0)")
i("v_max3_f32 v14, v16, v18, v20")
i("v_max3_f32 v14, v14, v22, v24")
i("v_max3_f32 v14, v14, v26, v28")
i("v_max_f32 v14, v14, v30")
for w in range(8):
    i(f"v_sub_f32 v{16+2*w}, v{16+2*w}, v14")
    i(f"v_mul_f32 v{16+2*w}, s70, v{16+2*w}")
    i(f"v_exp_f32 v{16+2*w}, v{16+2*w}")
i("v_mov_b32 v15, 0")
i("v_mov_b32 v6, 0")
i("v_mov_b32 v7, 0")
for w in range(8):
    i(f"v_fmac_f32 v15, v{16+2*w}, v{17+2*w}")
    i(f"v_fmac_f32 v6, v{16+2*w}, v{116+2*w}")
    i(f"v_fmac_f32 v7, v{16+2*w}, v{117+2*w}")
i("s_mul_i32 s15, s3, 544")
i("v_add_u32 v33, s15, v33")
i(f"ds_write_b64 v33, v[6:7] offset:{L_OF}")
i("v_and_b32 v33, 7, v2")
i("v_lshlrev_b32 v33, 2, v33")
i("v_add_u32 v33, s15, v33")
i("v_mov_b32 v8, 0")
i(f"ds_write_b32 v33, v8 offset:{L_OF+512}")
c("store (M,L): row = h*8+s")
i("s_lshl_b32 s9, s8, 3")
i("s_add_u32 s9, s9, s7")
i("s_lshl_b32 s10, s9, 3")
i("s_add_u32 s10, s10, %d" % WS_ML)
i("v_cmp_eq_u32 vcc, 0, v0")
i("s_nop 1")
i("s_and_saveexec_b64 s[72:73], vcc")
i("s_cbranch_execz L_skip_ml")
i("v_mov_b32 v33, 0")
i("buffer_store_dwordx2 v[14:15], v33, s[64:67], s10 offen")
e("L_skip_ml:")
i("s_mov_b64 exec, s[72:73]")
i("s_mul_i32 s9, s9, 2304")
i("v_lshlrev_b32 v36, 2, v37")
i("v_add_u32 v36, s15, v36")
i(f"v_add_u32 v36, {L_OF}, v36")
i("s_waitcnt lgkmcnt(0)")
proj_rows(19, 40, 36, L_YP, 9)
i("s_branch L_done")

e("L_ffn:")
c("================= FFN role: f = xcd*4 + (j-28), 144 columns =================")
i("s_lshl_b32 s8, s4, 2")
i("s_add_u32 s8, s8, s5")
i("s_sub_u32 s8, s8, 28")
c("SRD gate s[52:55], up s[60:63], down s[56:59]")
i("s_mov_b32 s52, s28")
i("s_and_b32 s53, s29, 0xffff")
i("s_mov_b32 s54, %d" % (576*4608*2))
i("s_mov_b32 s55, 0x00020000")
i("s_mov_b32 s60, s30")
i("s_and_b32 s61, s31, 0xffff")
i("s_mov_b32 s62, %d" % (576*4608*2))
i("s_mov_b32 s63, 0x00020000")
i("s_mov_b32 s56, s32")
i("s_and_b32 s57, s33, 0xffff")
i("s_add_u32 s58, s8, 1")
i("s_mul_i32 s58, s58, %d" % (144*1152))
i("s_mov_b32 s59, 0x00020000")
c("t<504: r = t/18 (v36), c = t%18 (v37); voffset = r*9216 + c*16 ; soffset = f*288 + st*258048")
i("v_mul_u32_u24 v36, 3641, v0")
i("v_lshrrev_b32 v36, 16, v36")
i("v_mul_u32_u24 v37, 18, v36")
i("v_sub_u32 v37, v0, v37")
i("v_mul_u32_u24 v38, 9216, v36")
i("v_lshl_add_u32 v38, v37, 4, v38")
i("v_cmp_gt_u32 vcc, 504, v0")
i("v_mov_b32 v35, 0x80000000")
i("s_nop 1")
i("v_cndmask_b32 v38, v35, v38, vcc")
i("s_mul_i32 s15, s8, 288")
GST, UST = 40, 124
for st in range(21):
    i(f"buffer_load_dwordx4 v[{GST+4*st}:{GST+4*st+3}], v38, s[52:55], s15 offen")
    i(f"buffer_load_dwordx4 v[{UST+4*st}:{UST+4*st+3}], v38, s[60:63], s15 offen")
    if st < 20:
        i("s_add_u32 s15, s15, 258048")
layernorm(42)
i("v_lshlrev_b32 v39, 2, v36")
for st in range(21):
    i(f"ds_read_b32 v{14+st}, v39 offset:{L_XN + 112*st}")
for a in range(8):
    i(f"v_mov_b32 v{6+a}, 0")
    i(f"v_mov_b32 v{208+a}, 0")
i("s_waitcnt lgkmcnt(0)")
for st in range(21):
    i(f"s_waitcnt vmcnt({2*(20-st)})")
    for (base, acc) in ((GST, 6), (UST, 208)):
        for d in range(4):
            r = base + 4*st + d
            i(f"v_lshlrev_b32 v35, 16, v{r}")
            i(f"v_and_b32 v{r}, 0xffff0000, v{r}")
            i(f"v_fmac_f32 v{acc+2*d}, v{14+st}, v35")
            i(f"v_fmac_f32 v{acc+1+2*d}, v{14+st}, v{r}")
c("GU partials to LDS")
i("v_mul_u32_u24 v39, 576, v36")
i("v_lshl_add_u32 v39, v37, 5, v39")
i(f"ds_write_b128 v39, v[6:9] offset:{L_GU}")
i(f"ds_write_b128 v39, v[10:13] offset:{L_GU+16}")
i(f"ds_write_b128 v39, v[208:211] offset:{L_GU+16704}")
i(f"ds_write_b128 v39, v[212:215] offset:{L_GU+16704+16}")
c("down loads")
thread_div72()
i("v_lshlrev_b32 v39, 4, v0")
i("v_cmp_gt_u32 vcc, 504, v0")
i("v_mov_b32 v35, 0x80000000")
i("s_nop 1")
i("v_cndmask_b32 v39, v35, v39, vcc")
i("s_mul_i32 s15, s8, %d" % (144*1152))
for st in range(21):
    i(f"buffer_load_dwordx4 v[{40+4*st}:{43+4*st}], v39, s[56:59], s15 offen")
    if st < 20:
        i("s_add_u32 s15, s15, 8064")
i("s_waitcnt lgkmcnt(0)")
i("s_barrier")
c("t<288: sum 28 partials; addr = (t>=144)*16704 + (t%144)*4")
i("v_cmp_le_u32 vcc, 144, v0")
i("v_lshlrev_b32 v14, 2, v0")
i("v_add_u32 v15, %d, v14" % (16704 - 576))
i("s_nop 0")
i("v_cndmask_b32 v14, v14, v15, vcc")
i("v_cmp_gt_u32 vcc, 288, v0")
i("s_nop 1")
i("s_and_saveexec_b64 s[72:73], vcc")
i("s_cbranch_execz L_ffn_a")
for r in range(28):
    i(f"ds_read_b32 v{130+r}, v14 offset:{L_GU + 576*r}")
i("s_waitcnt lgkmcnt(0)")
for r in range(1, 28):
    i(f"v_add_f32 v130, v130, v{130+r}")
round_bf16(130)
i("v_lshlrev_b32 v14, 2, v0")
i(f"ds_write_b32 v14, v130 offset:{L_GS}")
e("L_ffn_a:")
i("s_mov_b64 exec, s[72:73]")
i("s_waitcnt lgkmcnt(0)")
i("s_barrier")
c("t<152: hid")
i("v_cmp_gt_u32 vcc, 152, v0")
i("s_nop 1")
i("s_and_saveexec_b64 s[72:73], vcc")
i("s_cbranch_execz L_ffn_b")
i("v_lshlrev_b32 v14, 2, v0")
i(f"ds_read_b32 v15, v14 offset:{L_GS}")
i(f"ds_read_b32 v16, v14 offset:{L_GS+576}")
i("s_waitcnt lgkmcnt(0)")
c("gelu tanh: 0.5*g*(1+tanh(c0*(g+0.044715 g^3))) = g * (1 - 1/(exp(2u)+1))")
i("v_mul_f32 v17, v15, v15")
i("v_mul_f32 v17, 0x%08x, v17" % f2u(0.044715))
i("v_fma_f32 v17, v17, v15, v15")
i("v_mul_f32 v17, 0x%08x, v17" % f2u(2.0*0.7978845608028654*1.4426950408889634))
i("v_exp_f32 v17, v17")
i("s_nop 0")
i("v_add_f32 v17, 1.0, v17")
i("v_rcp_f32 v17, v17")
i("s_nop 0")
i("v_sub_f32 v17, 1.0, v17")
i("v_mul_f32 v17, v15, v17")
round_bf16(17)
i("v_mul_f32 v17, v17, v16")
round_bf16(17)
i("v_cmp_gt_u32 vcc, 144, v0")
i("s_nop 1")
i("v_cndmask_b32 v17, 0, v17, vcc")
i(f"ds_write_b32 v14, v17 offset:{L_HID}")
e("L_ffn_b:")
i("s_mov_b64 exec, s[72:73]")
i("s_waitcnt lgkmcnt(0)")
i("s_barrier")
i("s_lshl_b32 s9, s8, 3")
i("s_add_u32 s9, s9, 7")
i("s_mul_i32 s9, s9, 2304")
i("v_lshlrev_b32 v36, 2, v37")
i(f"v_add_u32 v36, {L_HID}, v36")
proj_rows(21, 40, 36, L_YP2, 9)
e("L_done:")
i("s_endpgm")

e(".globl fin_kernel")
e(".p2align 8")
e(".type fin_kernel,@function")
e("fin_kernel:")
i("s_cmp_ge_u32 s2, 36")
i("s_cbranch_scc1 L_fdone")
i("s_load_dwordx2 s[4:5], s[0:1], 0")
i("s_load_dwordx2 s[6:7], s[0:1], 72")
i("s_load_dwordx2 s[8:9], s[0:1], 88")
i("s_mov_b32 s30, 0x%08x" % LOG2E)
i("v_mul_u32_u24 v1, 2304, v0")
i("v_lshlrev_b32 v2, 3, v0")
i("v_lshlrev_b32 v3, 1, v0")
i("s_lshl_b32 s3, s2, 6")
i("s_lshl_b32 s28, s2, 5")
i("s_waitcnt lgkmcnt(0)")
i("s_mov_b32 s12, s8")
i("s_and_b32 s13, s9, 0xffff")
i("s_mov_b32 s14, 0x100000")
i("s_mov_b32 s15, 0x00020000")
i("s_mov_b32 s16, s4")
i("s_and_b32 s17, s5, 0xffff")
i("s_movk_i32 s18, 1152")
i("s_mov_b32 s19, 0x00020000")
i("s_mov_b32 s20, s6")
i("s_and_b32 s21, s7, 0xffff")
i("s_movk_i32 s22, 1152")
i("s_mov_b32 s23, 0x00020000")
i("s_mov_b32 s24, %d" % WS_ML)
i("buffer_load_dwordx2 v[4:5], v2, s[12:15], s24 offen")
for d in range(4):
    i(f"buffer_load_dwordx4 v[{8+4*d}:{11+4*d}], v1, s[12:15], s3 offen offset:{16*d}")
i("buffer_load_ushort v6, v3, s[16:19], s28 offen")
i("v_and_b32 v7, 7, v0")
i("v_cmp_eq_u32 vcc, 7, v7")
i("v_mov_b32 v24, 0xff800000")
i("s_waitcnt vmcnt(5)")
i("v_cndmask_b32 v4, v4, v24, vcc")
i("v_cndmask_b32 v5, v5, 0, vcc") if False else None
i("v_mov_b32 v25, 0")
i("v_cndmask_b32 v5, v5, v25, vcc")
def red8(op, v):
    for mod in ("quad_perm:[1,0,3,2]", "quad_perm:[2,3,0,1]", "row_half_mirror"):
        i("s_nop 1")
        i(f"{op}_dpp v{v}, v{v}, v{v} {mod} row_mask:0xf bank_mask:0xf")
i("v_mov_b32 v26, v4")
red8("v_max_f32", 26)
i("v_sub_f32 v27, v4, v26")
i("v_mul_f32 v27, s30, v27")
i("v_exp_f32 v27, v27")
i("s_nop 0")
i("v_mul_f32 v28, v27, v5")
red8("v_add_f32", 28)
i("v_rcp_f32 v29, v28")
i("s_nop 0")
i("v_fma_f32 v30, -v28, v29, 1.0")
i("v_fma_f32 v29, v30, v29, v29")
i("v_mul_f32 v27, v27, v29")
i("v_mov_b32 v25, 1.0")
i("v_cndmask_b32 v27, v27, v25, vcc")
i("s_waitcnt vmcnt(1)")
for a in range(16):
    i(f"v_mul_f32 v{8+a}, v{8+a}, v27")
for a in range(16):
    i(f"v_add_f32_dpp v{8+a}, v{8+a}, v{8+a} row_ror:8 row_mask:0xf bank_mask:0xf")
i("s_nop 1")
for a in range(16):
    allreduce_rows("v_add_f32", 8+a, 31)
c("LDS [w][s][16]")
i("v_lshrrev_b32 v31, 6, v0")
i("v_lshlrev_b32 v31, 9, v31")
i("v_lshl_add_u32 v31, v7, 6, v31")
for d in range(4):
    i(f"ds_write_b128 v31, v[{8+4*d}:{11+4*d}] offset:{16*d}")
i("s_waitcnt lgkmcnt(0)")
i("s_barrier")
i("v_cmp_gt_u32 vcc, 16, v0")
i("s_nop 1")
i("s_and_saveexec_b64 s[26:27], vcc")
i("s_cbranch_execz L_fdone")
i("v_lshlrev_b32 v31, 2, v0")
for w in range(4):
    for s in range(8):
        i(f"ds_read_b32 v{32+8*w+s}, v31 offset:{512*w+64*s}")
i("s_waitcnt lgkmcnt(0)")
first = True
for w in range(4):
    for s in range(7):
        if first:
            first = False
            continue
        i(f"v_add_f32 v32, v32, v{32+8*w+s}")
for w in range(1, 4):
    i(f"v_add_f32 v39, v39, v{39+8*w}")
round_bf16(32)
round_bf16(39)
i("s_waitcnt vmcnt(0)")
i("v_lshlrev_b32 v6, 16, v6")
i("v_add_f32 v6, v6, v32")
round_bf16(6)
i("v_add_f32 v6, v6, v39")
i("v_cvt_pk_bf16_f32 v6, v6, v6")
i("buffer_store_short v6, v3, s[20:23], s28 offen")
e("L_fdone:")
i("s_endpgm")

e(""".section .rodata,"a"
.p2align 6
.amdhsa_kernel %s
  .amdhsa_next_free_vgpr 248
  .amdhsa_next_free_sgpr 80
  .amdhsa_accum_offset 248
  .amdhsa_group_segment_fixed_size 0
  .amdhsa_kernarg_size 96
  .amdhsa_user_sgpr_count 2
  .amdhsa_user_sgpr_kernarg_segment_ptr 1
  .amdhsa_system_sgpr_workgroup_id_x 1
.end_amdhsa_kernel
.p2align 6
.amdhsa_kernel fin_kernel
  .amdhsa_next_free_vgpr 64
  .amdhsa_next_free_sgpr 40
  .amdhsa_accum_offset 64
  .amdhsa_group_segment_fixed_size 0
  .amdhsa_kernarg_size 96
  .amdhsa_user_sgpr_count 2
  .amdhsa_user_sgpr_kernarg_segment_ptr 1
  .amdhsa_system_sgpr_workgroup_id_x 1
.end_amdhsa_kernel""" % KNAME)

path = sys.argv[1] if len(sys.argv) > 1 else "parallel_sum__mha_block_cached__geglu_ffn__decode.s"
open(path, "w").write("\n".join(out) + "\n")
print("wrote", path, len(out), "lines")
```

```python
import sys

MAP = 0
import os
NSLOT = int(os.environ.get('NSLOT', '1'))
NPRE = min(NSLOT, int(os.environ.get('NPRE', '1')))
WNT = int(os.environ.get('WNT', '0'))
NT = True
out = []
wS = ' nt' if WNT else ''
def e(s=""):
    out.append(s)
def c(s):
    out.append("    ; " + s)
def i(s):
    out.append("    " + s)

VQ = []
def vq(tag, n=1):
    for _ in range(n): VQ.append(tag)
def vwait(tag):
    idxs = [k for k, t in enumerate(VQ) if t == tag]
    assert idxs, tag
    n = len(VQ) - 1 - idxs[-1]
    i(f"s_waitcnt vmcnt({n})")
    del VQ[:idxs[-1]+1]
    return n
STAMP = (len(sys.argv) > 2 and sys.argv[2] == "stamp")
def stamp(idx):
    if not STAMP: return
    i(f"s_memrealtime s[{80+2*idx}:{81+2*idx}]")
def stamp_flush():
    if not STAMP: return
    i("s_mov_b64 exec, -1")
    stamp(7)
    i("s_waitcnt lgkmcnt(0)")
    i("s_lshl_b32 s78, s2, 9")
    i("s_lshl_b32 s79, s3, 6")
    i("s_add_u32 s78, s78, s79")
    i("s_add_u32 s78, s78, 0x100000")
    i("v_mov_b32 v246, 0")
    for idx in range(8):
        i(f"v_mov_b32 v247, s{80+2*idx}")
        i(f"buffer_store_dword v247, v246, s[64:67], s78 offen offset:{4*idx}")
KNAME = "parallel_sum__mha_block_cached__geglu_ffn__decode_kernel"

assert all((t*911)>>16 == t//72 for t in range(512))
assert all((t*3641)>>16 == t//18 for t in range(512))
assert all((W*128*9363)>>16 == (W*128)//7 for W in range(57))
assert all((w*9363)>>16 == w//7 for w in range(256))
assert all((j*37)>>8 == j//7 for j in range(28))

LOG2E = 0x3fb8aa3b
SCALE = 0x3db504f3
import struct
def f2u(x): return struct.unpack("<I", struct.pack("<f", x))[0]
assert f2u(0.08838834764831845) == SCALE
assert f2u(1.4426950408889634) == LOG2E

L_XN = 0
L_QP = 2560
L_QB = 6656
L_OP = 8704
L_ML = 12800
L_OF = 12928
L_YP = 17408
L_GU = 2560
L_GS = 36096
L_HID = 37248
L_YP2 = 2560
LDS_BYTES = 38912

WS_ML = 0x90000

hdr = """; Kernarg layout for this problem (96 bytes, ptrs only, base s[0:1]):
;   offset   0: d_in[0] A_x  shape=(1, 1, 576) dtype=bfloat16
;   offset   8: d_in[1] A_k_cache  shape=(1, 32, 16384, 128) dtype=bfloat16
;   offset  16: d_in[2] A_v_cache  shape=(1, 32, 16384, 128) dtype=bfloat16
;   offset  24: d_in[3] A_wq  shape=(576, 4096) dtype=bfloat16
;   offset  32: d_in[4] A_wo  shape=(4096, 576) dtype=bfloat16
;   offset  40: d_in[5] B_x  shape=(1, 1, 576) dtype=bfloat16
;   offset  48: d_in[6] B_w_gate  shape=(576, 4608) dtype=bfloat16
;   offset  56: d_in[7] B_w_up  shape=(576, 4608) dtype=bfloat16
;   offset  64: d_in[8] B_w_down  shape=(4608, 576) dtype=bfloat16
;   offset  72: d_out     shape=(1, 1, 576) dtype=bfloat16 (2 bytes/elem)
;   offset  80: d_debug   256 bytes
;   offset  88: d_ws      536870912 bytes workspace
; @launch kernel=%s grid=(256,1,1) block=(512,1,1) lds=%d
; @launch kernel=fin_kernel grid=(36,1,1) block=(256,1,1) lds=2048
.amdgcn_target "amdgcn-amd-amdhsa--gfx950"
.text
""" % (KNAME, LDS_BYTES)
e(hdr.rstrip("\n"))

def allreduce_rows(op, v, tmp):
    i(f"v_mov_b32 v{tmp}, v{v}")
    i("s_nop 1")
    i(f"v_permlane16_swap_b32 v{v}, v{tmp}")
    i("s_nop 1")
    i(f"{op} v{v}, v{v}, v{tmp}")
    i(f"v_mov_b32 v{tmp}, v{v}")
    i("s_nop 1")
    i(f"v_permlane32_swap_b32 v{v}, v{tmp}")
    i("s_nop 1")
    i(f"{op} v{v}, v{v}, v{tmp}")

def allreduce_row16(op, v):
    for r in (8, 4, 2, 1):
        i("s_nop 1")
        i(f"{op}_dpp v{v}, v{v}, v{v} row_ror:{r} row_mask:0xf bank_mask:0xf")

def round_bf16(v, tmp=None):
    i(f"v_cvt_pk_bf16_f32 v{v}, v{v}, v{v}")
    i(f"v_and_b32 v{v}, 0xffff0000, v{v}")

e(f".globl {KNAME}")
e(".p2align 8")
e(f".type {KNAME},@function")
e(f"{KNAME}:")
i("s_cmp_ge_u32 s2, 256")
i("s_cbranch_scc1 L_exit")
stamp(0)
i("s_load_dwordx16 s[16:31], s[0:1], 0")
i("s_load_dwordx8 s[32:39], s[0:1], 64")
i("v_lshrrev_b32 v1, 6, v0")
i("v_and_b32 v2, 63, v0")
i("s_nop 0")
i("v_readfirstlane_b32 s3, v1")
i("s_and_b32 s4, s2, 7")
i("s_lshr_b32 s5, s2, 3")
i("s_mov_b32 s70, 0x%08x" % LOG2E)
i("s_mov_b32 s71, 0x%08x" % SCALE)
i("s_waitcnt lgkmcnt(0)")
c("SRD x: s[40:43]")
i("s_mov_b32 s40, s16")
i("s_and_b32 s41, s17, 0xffff")
i("s_movk_i32 s42, 1152")
i("s_mov_b32 s43, 0x00020000")
c("SRD ws: s[64:67]")
i("s_mov_b32 s64, s38")
i("s_and_b32 s65, s39, 0xffff")
i("s_mov_b32 s66, 0x200000")
i("s_mov_b32 s67, 0x00020000")
c("x loads")
i("v_lshlrev_b32 v1, 4, v2")
i("v_lshlrev_b32 v3, 1, v2")
i("buffer_load_dwordx4 v[16:19], v1, s[40:43], 0 offen")
i("buffer_load_ushort v20, v3, s[40:43], 0 offen offset:1024")
i("s_cmp_ge_u32 s5, 28")
i("s_cbranch_scc1 L_ffn")

def layernorm(nwait):
    i(f"s_waitcnt vmcnt({nwait})")
    for d in range(4):
        i(f"v_lshlrev_b32 v{22+2*d}, 16, v{16+d}")
        i(f"v_and_b32 v{23+2*d}, 0xffff0000, v{16+d}")
    i("v_lshlrev_b32 v30, 16, v20")
    i("v_add_f32 v31, v22, v23")
    for k in range(24, 31):
        i(f"v_add_f32 v31, v31, v{k}")
    allreduce_row16("v_add_f32", 31)
    i("s_nop 1")
    allreduce_rows("v_add_f32", 31, 32)
    i("v_mul_f32 v31, 0x%08x, v31" % f2u(1.0/576.0))
    i("v_sub_f32 v33, v22, v31")
    i("v_mul_f32 v32, v33, v33")
    for k in range(23, 31):
        i(f"v_sub_f32 v33, v{k}, v31")
        i("v_fmac_f32 v32, v33, v33")
    allreduce_row16("v_add_f32", 32)
    i("s_nop 1")
    allreduce_rows("v_add_f32", 32, 33)
    i("v_mul_f32 v32, 0x%08x, v32" % f2u(1.0/576.0))
    round_bf16(32)
    i("v_add_f32 v32, 0x%08x, v32" % f2u(1e-5))
    round_bf16(32)
    i("v_sqrt_f32 v32, v32")
    i("s_nop 0")
    round_bf16(32)
    i("v_rcp_f32 v33, v32")
    round_bf16(31)
    for k in range(22, 31):
        i(f"v_sub_f32 v{k}, v{k}, v31")
        round_bf16(k)
        i(f"v_mul_f32 v34, v{k}, v33")
        i(f"v_fma_f32 v35, -v34, v32, v{k}")
        i(f"v_fma_f32 v{k}, v35, v33, v34")
        round_bf16(k)
    i("v_lshlrev_b32 v34, 5, v2")
    i(f"ds_write_b128 v34, v[22:25] offset:{L_XN}")
    i(f"ds_write_b128 v34, v[26:29] offset:{L_XN+16}")
    i("v_lshlrev_b32 v34, 2, v2")
    i(f"ds_write_b32 v34, v30 offset:{L_XN+2048}")
    i("v_and_b32 v34, 60, v34")
    i("v_mov_b32 v35, 0")
    i(f"ds_write_b32 v34, v35 offset:{L_XN+2304}")

def proj_rows(nsteps, stg, l_src_addr_v, l_yp, final_row_s):
    for st in range(nsteps):
        i(f"ds_read_b32 v{14+st}, v{l_src_addr_v} offset:{28*st}")
    for a in range(8):
        i(f"v_mov_b32 v{6+a}, 0")
    i("s_waitcnt vmcnt(0) lgkmcnt(0)")
    for st in range(nsteps):
        for d in range(4):
            r = stg + 4*st + d
            i(f"v_lshlrev_b32 v{36+3}, 16, v{r}")
            i(f"v_and_b32 v{r}, 0xffff0000, v{r}")
            i(f"v_fmac_f32 v{6+2*d}, v{14+st}, v39")
            i(f"v_fmac_f32 v{7+2*d}, v{14+st}, v{r}")
    i("v_mul_u32_u24 v39, 2304, v37")
    i("v_lshl_add_u32 v39, v38, 5, v39")
    i(f"ds_write_b128 v39, v[6:9] offset:{l_yp}")
    i(f"ds_write_b128 v39, v[10:13] offset:{l_yp+16}")
    i("s_waitcnt lgkmcnt(0)")
    i("s_barrier")
    i("v_cmp_gt_u32 vcc, 144, v0")
    i("s_nop 1")
    i("s_and_saveexec_b64 s[72:73], vcc")
    i("s_cbranch_execz L_done")
    i("v_lshlrev_b32 v39, 4, v0")
    for r in range(7):
        i(f"ds_read_b128 v[{40+4*r}:{43+4*r}], v39 offset:{l_yp + 2304*r}")
    i("s_waitcnt lgkmcnt(0)")
    for r in range(1, 7):
        for d in range(4):
            i(f"v_add_f32 v{40+d}, v{40+d}, v{40+4*r+d}")
    i(f"buffer_store_dwordx4 v[40:43], v39, s[64:67], s{final_row_s} offen")

def thread_div72():
    i("v_mul_u32_u24 v37, 911, v0")
    i("v_lshrrev_b32 v37, 16, v37")
    i("v_mul_u32_u24 v38, 72, v37")
    i("v_sub_u32 v38, v0, v38")

c("================= attention role =================")
if MAP == 0:
    i("s_mul_i32 s6, s5, 37")
    i("s_lshr_b32 s6, s6, 8")
    i("s_mul_i32 s7, s6, 7")
    i("s_sub_u32 s7, s5, s7")
    i("s_lshl_b32 s8, s4, 2")
    i("s_add_u32 s8, s8, s6")
else:
    i("s_mul_i32 s8, s2, 9363")
    i("s_lshr_b32 s8, s8, 16")
    i("s_mul_i32 s7, s8, 7")
    i("s_sub_u32 s7, s2, s7")
c("SRD wq: s[52:55]")
i("s_mov_b32 s52, s22")
i("s_and_b32 s53, s23, 0xffff")
i("s_mov_b32 s54, %d" % (576*4096*2))
i("s_mov_b32 s55, 0x00020000")
c("SRD wo: s[56:59], num_records = (h+1)*128*1152")
i("s_mov_b32 s56, s24")
i("s_and_b32 s57, s25, 0xffff")
i("s_add_u32 s58, s8, 1")
i("s_mul_i32 s58, s58, %d" % (128*1152))
i("s_mov_b32 s59, 0x00020000")
c("WG-blocks of 128 keys: WG s takes blocks s, s+7, ...; wave w takes 16 keys of each")
i("s_cmp_lt_u32 s7, 2")
i("s_cselect_b32 s12, 19, 18")
i("s_lshl_b32 s13, s7, 15")
i("s_lshl_b32 s9, s3, 12")
i("s_add_u32 s13, s13, s9")
i("s_movk_i32 s11, 1024")
c("SRD K: s[44:47], V: s[48:51]; base += h*4MiB ; num_records = end*4096")
i("s_lshl_b32 s14, s8, 22")
i("s_add_u32 s44, s18, s14")
i("s_addc_u32 s45, s19, 0")
i("s_and_b32 s45, s45, 0xffff")
i("s_lshl_b32 s46, s11, 12")
i("s_mov_b32 s47, 0x00020000")
i("s_add_u32 s48, s20, s14")
i("s_addc_u32 s49, s21, 0")
i("s_and_b32 s49, s49, 0xffff")
i("s_mov_b32 s50, s46")
i("s_mov_b32 s51, 0x00020000")
c("wq loads: voffset = (t>>4)*8192 + h*256 + (t&15)*16 ; soffset = st*262144")
i("v_lshrrev_b32 v36, 4, v0")
i("v_lshlrev_b32 v37, 13, v36")
i("v_and_b32 v38, 15, v0")
i("v_lshl_add_u32 v37, v38, 4, v37")
i("s_lshl_b32 s15, s8, 8")
for st in range(18):
    i(f"buffer_load_dwordx4 v[{40+4*st}:{43+4*st}], v37, s[52:55], s15 offen{wS}")
    if st < 17:
        i("s_add_u32 s15, s15, 262144")
RB = 116
ntS = " nt" if NT else ""
VQ.clear(); vq("x", 2)
for st in range(18): vq(f"wq{st}")
def ld_k(slot, tag=None):
    for t in range(4):
        i(f"buffer_load_dwordx4 v[{RB+32*slot+4*t}:{RB+32*slot+4*t+3}], v1, s[44:47], s13 offen offset:{1024*t}{ntS}")
    vq(tag or "K", 4)
def ld_v(slot, tag=None):
    for t in range(4):
        i(f"buffer_load_dwordx4 v[{RB+32*slot+16+4*t}:{RB+32*slot+16+4*t+3}], v1, s[48:51], s13 offen offset:{1024*t}{ntS}")
    vq(tag or "V", 4)
def kv_prefetch(slots):
    for slot in slots:
        ld_k(slot, f"K{slot}"); ld_v(slot, f"V{slot}")
        i("s_add_u32 s13, s13, 229376")
kv_prefetch(range(NPRE))
layernorm(len(VQ) - 2); del VQ[:2]
c("xn values for this thread: xn[32*st + r], r = t>>4 (v36)")
i("v_lshlrev_b32 v36, 2, v36")
for st in range(18):
    i(f"ds_read_b32 v{14+st}, v36 offset:{L_XN + 128*st}")
for a in range(8):
    i(f"v_mov_b32 v{6+a}, 0")
i("s_waitcnt lgkmcnt(0)")
for st in range(18):
    vwait(f"wq{st}")
    for d in range(4):
        r = 40 + 4*st + d
        i(f"v_lshlrev_b32 v{32+(d&1)}, 16, v{r}")
        i(f"v_and_b32 v{r}, 0xffff0000, v{r}")
        i(f"v_fmac_f32 v{6+2*d}, v{14+st}, v{32+(d&1)}")
        i(f"v_fmac_f32 v{7+2*d}, v{14+st}, v{r}")
stamp(1)
c("reduce q partials across the 4 lane groups, then across waves through LDS")
for a in range(8):
    allreduce_rows("v_add_f32", 6+a, 32)
i("v_and_b32 v32, 15, v0")
i("v_lshlrev_b32 v32, 5, v32")
i("s_lshl_b32 s15, s3, 9")
i("v_add_u32 v32, s15, v32")
i(f"ds_write_b128 v32, v[6:9] offset:{L_QP}")
i(f"ds_write_b128 v32, v[10:13] offset:{L_QP+16}")
i("s_waitcnt lgkmcnt(0)")
i("s_barrier")
i("v_lshlrev_b32 v32, 3, v2")
for w in range(8):
    i(f"ds_read_b64 v[{14+2*w}:{15+2*w}], v32 offset:{L_QP + 512*w}")
kv_prefetch(range(NPRE, NSLOT))
i("s_waitcnt lgkmcnt(0)")
for w in range(1, 8):
    i(f"v_add_f32 v14, v14, v{14+2*w}")
    i(f"v_add_f32 v15, v15, v{15+2*w}")
i("v_cvt_pk_bf16_f32 v14, v14, v15")
i("s_lshl_b32 s15, s3, 8")
i("v_lshlrev_b32 v32, 2, v2")
i("v_add_u32 v32, s15, v32")
i(f"ds_write_b32 v32, v14 offset:{L_QB}")
i("v_and_b32 v32, 15, v0")
i("v_lshlrev_b32 v32, 4, v32")
i("v_add_u32 v32, s15, v32")
i("s_waitcnt lgkmcnt(0)")
i(f"ds_read_b128 v[2:5], v32 offset:{L_QB}")
for a in range(8):
    i(f"v_mov_b32 v{6+a}, 0")
i("v_mov_b32 v14, 0xff800000")
i("v_mov_b32 v15, 0")
i("s_mov_b32 s74, 0x%08x" % (f2u(-1.4426950408889634)))
i("s_waitcnt lgkmcnt(0)")

def block(slot, steady=False):
    K = RB + 32*slot
    V = K + 16
    n = vwait(f"K{slot}")
    if steady: assert n == 8*NSLOT-4, n
    for d in range(4):
        for t in range(4):
            src2 = "0" if d == 0 else f"v{16+t}"
            i(f"v_dot2_f32_bf16 v{16+t}, v{K+4*t+d}, v{2+d}, {src2}")
    ld_k(slot, f"K{slot}")
    for r in (8, 4, 2, 1):
        for t in range(4):
            i(f"v_add_f32_dpp v{16+t}, v{16+t}, v{16+t} row_ror:{r} row_mask:0xf bank_mask:0xf")
    def rnd():
        i("v_cvt_pk_bf16_f32 v24, v16, v17")
        i("v_cvt_pk_bf16_f32 v25, v18, v19")
        i("v_lshlrev_b32 v16, 16, v24")
        i("v_and_b32 v17, 0xffff0000, v24")
        i("v_lshlrev_b32 v18, 16, v25")
        i("v_and_b32 v19, 0xffff0000, v25")
    rnd()
    for t in range(4):
        i(f"v_mul_f32 v{16+t}, s71, v{16+t}")
    rnd()
    i("v_max3_f32 v24, v16, v17, v18")
    i("v_max3_f32 v24, v24, v19, v14")
    i("v_mul_f32 v33, s74, v24")
    i("v_fma_f32 v32, v14, s70, v33")
    for t in range(4):
        i(f"v_fma_f32 v{20+t}, v{16+t}, s70, v33")
    i("v_exp_f32 v32, v32")
    for t in range(4):
        i(f"v_exp_f32 v{20+t}, v{20+t}")
    i("v_mov_b32 v14, v24")
    i("v_fma_f32 v15, v15, v32, v20")
    i("v_add_f32 v24, v21, v22")
    i("v_add_f32 v15, v15, v23")
    i("v_add_f32 v15, v15, v24")
    for a in range(8):
        i(f"v_mul_f32 v{6+a}, v{6+a}, v32")
    n = vwait(f"V{slot}")
    if steady: assert n == 8*NSLOT-4, n
    for t in range(4):
        for d in range(4):
            u = 24 + 2*(d & 1)
            i(f"v_lshlrev_b32 v{u}, 16, v{V+4*t+d}")
            i(f"v_and_b32 v{u+1}, 0xffff0000, v{V+4*t+d}")
            i(f"v_fmac_f32 v{6+2*d}, v{20+t}, v{u}")
            i(f"v_fmac_f32 v{7+2*d}, v{20+t}, v{u+1}")
    ld_v(slot, f"V{slot}")
    i("s_add_u32 s13, s13, 229376")

stamp(2)
c("round 1")
for slot in range(NSLOT):
    block(slot)
c("wo loads into staging (issued now, consumed at the end)")
thread_div72()
i("v_lshlrev_b32 v39, 4, v0")
i("v_cmp_gt_u32 vcc, 504, v0")
i("v_mov_b32 v35, 0x80000000")
i("s_nop 1")
i("v_cndmask_b32 v39, v35, v39, vcc")
i("s_mul_i32 s15, s8, %d" % (128*1152))
for st in range(19):
    i(f"buffer_load_dwordx4 v[{40+4*st}:{43+4*st}], v39, s[56:59], s15 offen{wS}")
    if st < 18:
        i("s_add_u32 s15, s15, 8064")
vq("wo", 19)
c("round 2")
for slot in range(NSLOT):
    block(slot)
i(f"s_sub_u32 s12, s12, {2*NSLOT}")
stamp(3)
e("L_loop:")
for slot in range(NSLOT):
    block(slot, True)
    i("s_sub_u32 s12, s12, 1")
    i("s_cmp_eq_u32 s12, 0")
    if slot < NSLOT-1:
        i("s_cbranch_scc1 L_loop_done")
    else:
        i("s_cbranch_scc0 L_loop")
e("L_loop_done:")
stamp(4)
i("s_waitcnt vmcnt(0)")
c("merge the 4 lane groups of this wave")
i("v_mov_b32 v16, v14")
allreduce_rows("v_max_f32", 16, 32)
i("v_sub_f32 v17, v14, v16")
i("v_mul_f32 v17, s70, v17")
i("v_exp_f32 v17, v17")
i("s_nop 0")
i("v_mul_f32 v15, v15, v17")
for a in range(8):
    i(f"v_mul_f32 v{6+a}, v{6+a}, v17")
allreduce_rows("v_add_f32", 15, 32)
for a in range(8):
    allreduce_rows("v_add_f32", 6+a, 32)
i("v_and_b32 v32, 15, v0")
i("v_lshlrev_b32 v32, 5, v32")
i("s_lshl_b32 s15, s3, 9")
i("v_add_u32 v32, s15, v32")
i(f"ds_write_b128 v32, v[6:9] offset:{L_OP}")
i(f"ds_write_b128 v32, v[10:13] offset:{L_OP+16}")
i("s_lshl_b32 s15, s3, 3")
i("v_mov_b32 v32, s15")
i("v_mov_b32 v17, v15")
i(f"ds_write_b64 v32, v[16:17] offset:{L_ML}")
i("s_waitcnt lgkmcnt(0)")
i("s_barrier")
c("every wave: combine 8 waves -> o~[128] into its own LDS area")
i("v_mov_b32 v32, 0")
for w in range(8):
    i(f"ds_read_b64 v[{16+2*w}:{17+2*w}], v32 offset:{L_ML+8*w}")
i("v_and_b32 v2, 63, v0")
i("v_lshlrev_b32 v33, 3, v2")
for w in range(8):
    i(f"ds_read_b64 v[{116+2*w}:{117+2*w}], v33 offset:{L_OP+512*w}")
i("s_waitcnt lgkmcnt(0)")
i("v_max3_f32 v14, v16, v18, v20")
i("v_max3_f32 v14, v14, v22, v24")
i("v_max3_f32 v14, v14, v26, v28")
i("v_max_f32 v14, v14, v30")
for w in range(8):
    i(f"v_sub_f32 v{16+2*w}, v{16+2*w}, v14")
    i(f"v_mul_f32 v{16+2*w}, s70, v{16+2*w}")
    i(f"v_exp_f32 v{16+2*w}, v{16+2*w}")
i("v_mov_b32 v15, 0")
i("v_mov_b32 v6, 0")
i("v_mov_b32 v7, 0")
for w in range(8):
    i(f"v_fmac_f32 v15, v{16+2*w}, v{17+2*w}")
    i(f"v_fmac_f32 v6, v{16+2*w}, v{116+2*w}")
    i(f"v_fmac_f32 v7, v{16+2*w}, v{117+2*w}")
i("s_mul_i32 s15, s3, 544")
i("v_add_u32 v33, s15, v33")
i(f"ds_write_b64 v33, v[6:7] offset:{L_OF}")
i("v_and_b32 v33, 7, v2")
i("v_lshlrev_b32 v33, 2, v33")
i("v_add_u32 v33, s15, v33")
i("v_mov_b32 v8, 0")
i(f"ds_write_b32 v33, v8 offset:{L_OF+512}")
c("store (M,L): row = h*8+s")
i("s_lshl_b32 s9, s8, 3")
i("s_add_u32 s9, s9, s7")
i("s_lshl_b32 s10, s9, 3")
i("s_add_u32 s10, s10, %d" % WS_ML)
i("v_cmp_eq_u32 vcc, 0, v0")
i("s_nop 1")
i("s_and_saveexec_b64 s[72:73], vcc")
i("s_cbranch_execz L_skip_ml")
i("v_mov_b32 v33, 0")
i("buffer_store_dwordx2 v[14:15], v33, s[64:67], s10 offen")
e("L_skip_ml:")
i("s_mov_b64 exec, s[72:73]")
i("s_mul_i32 s9, s9, 2304")
i("v_lshlrev_b32 v36, 2, v37")
i("v_add_u32 v36, s15, v36")
i(f"v_add_u32 v36, {L_OF}, v36")
i("s_waitcnt lgkmcnt(0)")
stamp(5)
proj_rows(19, 40, 36, L_YP, 9)
i("s_branch L_done")

e("L_ffn:")
c("================= FFN role: f = xcd*4 + (j-28), 144 columns =================")
i("s_lshl_b32 s8, s4, 2")
i("s_add_u32 s8, s8, s5")
i("s_sub_u32 s8, s8, 28")
c("SRD gate s[52:55], up s[60:63], down s[56:59]")
i("s_mov_b32 s52, s28")
i("s_and_b32 s53, s29, 0xffff")
i("s_mov_b32 s54, %d" % (576*4608*2))
i("s_mov_b32 s55, 0x00020000")
i("s_mov_b32 s60, s30")
i("s_and_b32 s61, s31, 0xffff")
i("s_mov_b32 s62, %d" % (576*4608*2))
i("s_mov_b32 s63, 0x00020000")
i("s_mov_b32 s56, s32")
i("s_and_b32 s57, s33, 0xffff")
i("s_add_u32 s58, s8, 1")
i("s_mul_i32 s58, s58, %d" % (144*1152))
i("s_mov_b32 s59, 0x00020000")
c("t<504: r = t/18 (v36), c = t%18 (v37); voffset = r*9216 + c*16 ; soffset = f*288 + st*258048")
i("v_mul_u32_u24 v36, 3641, v0")
i("v_lshrrev_b32 v36, 16, v36")
i("v_mul_u32_u24 v37, 18, v36")
i("v_sub_u32 v37, v0, v37")
i("v_mul_u32_u24 v38, 9216, v36")
i("v_lshl_add_u32 v38, v37, 4, v38")
i("v_cmp_gt_u32 vcc, 504, v0")
i("v_mov_b32 v35, 0x80000000")
i("s_nop 1")
i("v_cndmask_b32 v38, v35, v38, vcc")
i("s_mul_i32 s15, s8, 288")
GST, UST = 40, 124
for st in range(21):
    i(f"buffer_load_dwordx4 v[{GST+4*st}:{GST+4*st+3}], v38, s[52:55], s15 offen{wS}")
    i(f"buffer_load_dwordx4 v[{UST+4*st}:{UST+4*st+3}], v38, s[60:63], s15 offen{wS}")
    if st < 20:
        i("s_add_u32 s15, s15, 258048")
layernorm(42)
i("v_lshlrev_b32 v39, 2, v36")
for st in range(21):
    i(f"ds_read_b32 v{14+st}, v39 offset:{L_XN + 112*st}")
for a in range(8):
    i(f"v_mov_b32 v{6+a}, 0")
    i(f"v_mov_b32 v{208+a}, 0")
i("s_waitcnt lgkmcnt(0)")
for st in range(21):
    i(f"s_waitcnt vmcnt({2*(20-st)})")
    for (base, acc) in ((GST, 6), (UST, 208)):
        for d in range(4):
            r = base + 4*st + d
            i(f"v_lshlrev_b32 v35, 16, v{r}")
            i(f"v_and_b32 v{r}, 0xffff0000, v{r}")
            i(f"v_fmac_f32 v{acc+2*d}, v{14+st}, v35")
            i(f"v_fmac_f32 v{acc+1+2*d}, v{14+st}, v{r}")
stamp(1)
c("GU partials to LDS")
i("v_mul_u32_u24 v39, 576, v36")
i("v_lshl_add_u32 v39, v37, 5, v39")
i(f"ds_write_b128 v39, v[6:9] offset:{L_GU}")
i(f"ds_write_b128 v39, v[10:13] offset:{L_GU+16}")
i(f"ds_write_b128 v39, v[208:211] offset:{L_GU+16704}")
i(f"ds_write_b128 v39, v[212:215] offset:{L_GU+16704+16}")
c("down loads")
thread_div72()
i("v_lshlrev_b32 v39, 4, v0")
i("v_cmp_gt_u32 vcc, 504, v0")
i("v_mov_b32 v35, 0x80000000")
i("s_nop 1")
i("v_cndmask_b32 v39, v35, v39, vcc")
i("s_mul_i32 s15, s8, %d" % (144*1152))
for st in range(21):
    i(f"buffer_load_dwordx4 v[{40+4*st}:{43+4*st}], v39, s[56:59], s15 offen{wS}")
    if st < 20:
        i("s_add_u32 s15, s15, 8064")
i("s_waitcnt lgkmcnt(0)")
i("s_barrier")
c("t<288: sum 28 partials; addr = (t>=144)*16704 + (t%144)*4")
i("v_cmp_le_u32 vcc, 144, v0")
i("v_lshlrev_b32 v14, 2, v0")
i("v_add_u32 v15, %d, v14" % (16704 - 576))
i("s_nop 0")
i("v_cndmask_b32 v14, v14, v15, vcc")
i("v_cmp_gt_u32 vcc, 288, v0")
i("s_nop 1")
i("s_and_saveexec_b64 s[72:73], vcc")
i("s_cbranch_execz L_ffn_a")
for r in range(28):
    i(f"ds_read_b32 v{130+r}, v14 offset:{L_GU + 576*r}")
i("s_waitcnt lgkmcnt(0)")
for r in range(1, 28):
    i(f"v_add_f32 v130, v130, v{130+r}")
round_bf16(130)
i("v_lshlrev_b32 v14, 2, v0")
i(f"ds_write_b32 v14, v130 offset:{L_GS}")
e("L_ffn_a:")
i("s_mov_b64 exec, s[72:73]")
i("s_waitcnt lgkmcnt(0)")
i("s_barrier")
c("t<152: hid")
i("v_cmp_gt_u32 vcc, 152, v0")
i("s_nop 1")
i("s_and_saveexec_b64 s[72:73], vcc")
i("s_cbranch_execz L_ffn_b")
i("v_lshlrev_b32 v14, 2, v0")
i(f"ds_read_b32 v15, v14 offset:{L_GS}")
i(f"ds_read_b32 v16, v14 offset:{L_GS+576}")
i("s_waitcnt lgkmcnt(0)")
c("gelu tanh: 0.5*g*(1+tanh(c0*(g+0.044715 g^3))) = g * (1 - 1/(exp(2u)+1))")
i("v_mul_f32 v17, v15, v15")
i("v_mul_f32 v17, 0x%08x, v17" % f2u(0.044715))
i("v_fma_f32 v17, v17, v15, v15")
i("v_mul_f32 v17, 0x%08x, v17" % f2u(2.0*0.7978845608028654*1.4426950408889634))
i("v_exp_f32 v17, v17")
i("s_nop 0")
i("v_add_f32 v17, 1.0, v17")
i("v_rcp_f32 v17, v17")
i("s_nop 0")
i("v_sub_f32 v17, 1.0, v17")
i("v_mul_f32 v17, v15, v17")
round_bf16(17)
i("v_mul_f32 v17, v17, v16")
round_bf16(17)
i("v_cmp_gt_u32 vcc, 144, v0")
i("s_nop 1")
i("v_cndmask_b32 v17, 0, v17, vcc")
i(f"ds_write_b32 v14, v17 offset:{L_HID}")
e("L_ffn_b:")
i("s_mov_b64 exec, s[72:73]")
i("s_waitcnt lgkmcnt(0)")
i("s_barrier")
i("s_lshl_b32 s9, s8, 3")
i("s_add_u32 s9, s9, 7")
i("s_mul_i32 s9, s9, 2304")
i("v_lshlrev_b32 v36, 2, v37")
i(f"v_add_u32 v36, {L_HID}, v36")
stamp(5)
proj_rows(21, 40, 36, L_YP2, 9)
e("L_done:")
stamp_flush()
e("L_exit:")
i("s_endpgm")

e(".globl fin_kernel")
e(".p2align 8")
e(".type fin_kernel,@function")
e("fin_kernel:")
i("s_cmp_ge_u32 s2, 36")
i("s_cbranch_scc1 L_fdone")
i("s_load_dwordx2 s[4:5], s[0:1], 0")
i("s_load_dwordx2 s[6:7], s[0:1], 72")
i("s_load_dwordx2 s[8:9], s[0:1], 88")
i("s_mov_b32 s30, 0x%08x" % LOG2E)
i("v_mul_u32_u24 v1, 2304, v0")
i("v_lshlrev_b32 v2, 3, v0")
i("v_lshlrev_b32 v3, 1, v0")
i("s_lshl_b32 s3, s2, 6")
i("s_lshl_b32 s28, s2, 5")
i("s_waitcnt lgkmcnt(0)")
i("s_mov_b32 s12, s8")
i("s_and_b32 s13, s9, 0xffff")
i("s_mov_b32 s14, 0x100000")
i("s_mov_b32 s15, 0x00020000")
i("s_mov_b32 s16, s4")
i("s_and_b32 s17, s5, 0xffff")
i("s_movk_i32 s18, 1152")
i("s_mov_b32 s19, 0x00020000")
i("s_mov_b32 s20, s6")
i("s_and_b32 s21, s7, 0xffff")
i("s_movk_i32 s22, 1152")
i("s_mov_b32 s23, 0x00020000")
i("s_mov_b32 s24, %d" % WS_ML)
i("buffer_load_dwordx2 v[4:5], v2, s[12:15], s24 offen")
for d in range(4):
    i(f"buffer_load_dwordx4 v[{8+4*d}:{11+4*d}], v1, s[12:15], s3 offen offset:{16*d}")
i("buffer_load_ushort v6, v3, s[16:19], s28 offen")
i("v_and_b32 v7, 7, v0")
i("v_cmp_eq_u32 vcc, 7, v7")
i("v_mov_b32 v24, 0xff800000")
i("s_waitcnt vmcnt(5)")
i("v_cndmask_b32 v4, v4, v24, vcc")
i("v_cndmask_b32 v5, v5, 0, vcc") if False else None
i("v_mov_b32 v25, 0")
i("v_cndmask_b32 v5, v5, v25, vcc")
def red8(op, v):
    for mod in ("quad_perm:[1,0,3,2]", "quad_perm:[2,3,0,1]", "row_half_mirror"):
        i("s_nop 1")
        i(f"{op}_dpp v{v}, v{v}, v{v} {mod} row_mask:0xf bank_mask:0xf")
i("v_mov_b32 v26, v4")
red8("v_max_f32", 26)
i("v_sub_f32 v27, v4, v26")
i("v_mul_f32 v27, s30, v27")
i("v_exp_f32 v27, v27")
i("s_nop 0")
i("v_mul_f32 v28, v27, v5")
red8("v_add_f32", 28)
i("v_rcp_f32 v29, v28")
i("s_nop 0")
i("v_fma_f32 v30, -v28, v29, 1.0")
i("v_fma_f32 v29, v30, v29, v29")
i("v_mul_f32 v27, v27, v29")
i("v_mov_b32 v25, 1.0")
i("v_cndmask_b32 v27, v27, v25, vcc")
i("s_waitcnt vmcnt(1)")
for a in range(16):
    i(f"v_mul_f32 v{8+a}, v{8+a}, v27")
for a in range(16):
    i(f"v_add_f32_dpp v{8+a}, v{8+a}, v{8+a} row_ror:8 row_mask:0xf bank_mask:0xf")
i("s_nop 1")
for a in range(16):
    allreduce_rows("v_add_f32", 8+a, 31)
c("LDS [w][s][16]")
i("v_lshrrev_b32 v31, 6, v0")
i("v_lshlrev_b32 v31, 9, v31")
i("v_lshl_add_u32 v31, v7, 6, v31")
for d in range(4):
    i(f"ds_write_b128 v31, v[{8+4*d}:{11+4*d}] offset:{16*d}")
i("s_waitcnt lgkmcnt(0)")
i("s_barrier")
i("v_cmp_gt_u32 vcc, 16, v0")
i("s_nop 1")
i("s_and_saveexec_b64 s[26:27], vcc")
i("s_cbranch_execz L_fdone")
i("v_lshlrev_b32 v31, 2, v0")
for w in range(4):
    for s in range(8):
        i(f"ds_read_b32 v{32+8*w+s}, v31 offset:{512*w+64*s}")
i("s_waitcnt lgkmcnt(0)")
first = True
for w in range(4):
    for s in range(7):
        if first:
            first = False
            continue
        i(f"v_add_f32 v32, v32, v{32+8*w+s}")
for w in range(1, 4):
    i(f"v_add_f32 v39, v39, v{39+8*w}")
round_bf16(32)
round_bf16(39)
i("s_waitcnt vmcnt(0)")
i("v_lshlrev_b32 v6, 16, v6")
i("v_add_f32 v6, v6, v32")
round_bf16(6)
i("v_add_f32 v6, v6, v39")
i("v_cvt_pk_bf16_f32 v6, v6, v6")
i("buffer_store_short v6, v3, s[20:23], s28 offen")
e("L_fdone:")
i("s_endpgm")

e(""".section .rodata,"a"
.p2align 6
.amdhsa_kernel %s
  .amdhsa_next_free_vgpr 248
  .amdhsa_next_free_sgpr 100
  .amdhsa_accum_offset 248
  .amdhsa_group_segment_fixed_size 0
  .amdhsa_kernarg_size 96
  .amdhsa_user_sgpr_count 2
  .amdhsa_user_sgpr_kernarg_segment_ptr 1
  .amdhsa_system_sgpr_workgroup_id_x 1
.end_amdhsa_kernel
.p2align 6
.amdhsa_kernel fin_kernel
  .amdhsa_next_free_vgpr 64
  .amdhsa_next_free_sgpr 40
  .amdhsa_accum_offset 64
  .amdhsa_group_segment_fixed_size 0
  .amdhsa_kernarg_size 96
  .amdhsa_user_sgpr_count 2
  .amdhsa_user_sgpr_kernarg_segment_ptr 1
  .amdhsa_system_sgpr_workgroup_id_x 1
.end_amdhsa_kernel""" % KNAME)

path = sys.argv[1] if len(sys.argv) > 1 else "parallel_sum__mha_block_cached__geglu_ffn__decode.s"
open(path, "w").write("\n".join(out) + "\n")
print("wrote", path, len(out), "lines")
```

```python
import sys, os

MAP = int(os.environ.get("MAP","0"))
import os
NSLOT = int(os.environ.get('NSLOT', '1'))
NPRE = min(NSLOT, int(os.environ.get('NPRE', '1')))
WNT = int(os.environ.get('WNT', '0'))
NT = bool(int(os.environ.get("KVNT","1")))
out = []
wS = ' nt' if WNT else ''
def e(s=""):
    out.append(s)
def c(s):
    out.append("    ; " + s)
def i(s):
    out.append("    " + s)

VQ = []
def vq(tag, n=1):
    for _ in range(n): VQ.append(tag)
def vwait(tag):
    idxs = [k for k, t in enumerate(VQ) if t == tag]
    assert idxs, tag
    n = len(VQ) - 1 - idxs[-1]
    i(f"s_waitcnt vmcnt({n})")
    del VQ[:idxs[-1]+1]
    return n
STAMP = (len(sys.argv) > 2 and sys.argv[2] == "stamp")
DBGS = (len(sys.argv) > 2 and sys.argv[2] == "dbg")
STAMP = STAMP or DBGS
def stamp(idx):
    if not STAMP: return
    i(f"s_memrealtime s[{80+2*idx}:{81+2*idx}]")
def stamp_flush():
    if not STAMP: return
    i("s_mov_b64 exec, -1")
    stamp(7)
    i("s_waitcnt lgkmcnt(0)")
    if DBGS:
        i("s_mov_b32 s76, s36")
        i("s_and_b32 s77, s37, 0xffff")
        i("s_movk_i32 s78, 256")
        i("s_mov_b32 s79, 0x00020000")
        i("v_mov_b32 v246, 0")
        i("s_not_b32 s80, s80")
        for (slot, idx) in ((0, 0), (1, 7), (4, 2), (5, 4), (6, 1)):
            i(f"v_mov_b32 v247, s{80+2*idx}")
            i(f"buffer_atomic_umax v247, v246, s[76:79], 0 offen offset:{4*slot}")
        return
    i("s_lshl_b32 s78, s2, 9")
    i("s_lshl_b32 s79, s3, 6")
    i("s_add_u32 s78, s78, s79")
    i("s_add_u32 s78, s78, 0x100000")
    i("v_mov_b32 v246, 0")
    for idx in range(8):
        i(f"v_mov_b32 v247, s{80+2*idx}")
        i(f"buffer_store_dword v247, v246, s[64:67], s78 offen offset:{4*idx}")
KNAME = "parallel_sum__mha_block_cached__geglu_ffn__decode_kernel"

assert all((t*911)>>16 == t//72 for t in range(512))
assert all((t*3641)>>16 == t//18 for t in range(512))
assert all((W*128*9363)>>16 == (W*128)//7 for W in range(57))
assert all((w*9363)>>16 == w//7 for w in range(256))
assert all((j*37)>>8 == j//7 for j in range(28))

LOG2E = 0x3fb8aa3b
SCALE = 0x3db504f3
import struct
def f2u(x): return struct.unpack("<I", struct.pack("<f", x))[0]
assert f2u(0.08838834764831845) == SCALE
assert f2u(1.4426950408889634) == LOG2E

L_XN = 0
L_QP = 2560
L_QB = 6656
L_OP = 8704
L_ML = 12800
L_OF = 12928
L_YP = 17408
L_GU = 2560
L_GS = 36096
L_HID = 37248
L_YP2 = 2560
LDS_BYTES = 38912

WS_ML = 0x90000

hdr = """; Kernarg layout for this problem (96 bytes, ptrs only, base s[0:1]):
;   offset   0: d_in[0] A_x  shape=(1, 1, 576) dtype=bfloat16
;   offset   8: d_in[1] A_k_cache  shape=(1, 32, 16384, 128) dtype=bfloat16
;   offset  16: d_in[2] A_v_cache  shape=(1, 32, 16384, 128) dtype=bfloat16
;   offset  24: d_in[3] A_wq  shape=(576, 4096) dtype=bfloat16
;   offset  32: d_in[4] A_wo  shape=(4096, 576) dtype=bfloat16
;   offset  40: d_in[5] B_x  shape=(1, 1, 576) dtype=bfloat16
;   offset  48: d_in[6] B_w_gate  shape=(576, 4608) dtype=bfloat16
;   offset  56: d_in[7] B_w_up  shape=(576, 4608) dtype=bfloat16
;   offset  64: d_in[8] B_w_down  shape=(4608, 576) dtype=bfloat16
;   offset  72: d_out     shape=(1, 1, 576) dtype=bfloat16 (2 bytes/elem)
;   offset  80: d_debug   256 bytes
;   offset  88: d_ws      536870912 bytes workspace
; @launch kernel=%s grid=(256,1,1) block=(512,1,1) lds=%d
; @launch kernel=fin_kernel grid=(36,1,1) block=(256,1,1) lds=2048
.amdgcn_target "amdgcn-amd-amdhsa--gfx950"
.text
""" % (KNAME, LDS_BYTES)
e(hdr.rstrip("\n"))

def allreduce_rows(op, v, tmp):
    i(f"v_mov_b32 v{tmp}, v{v}")
    i("s_nop 1")
    i(f"v_permlane16_swap_b32 v{v}, v{tmp}")
    i("s_nop 1")
    i(f"{op} v{v}, v{v}, v{tmp}")
    i(f"v_mov_b32 v{tmp}, v{v}")
    i("s_nop 1")
    i(f"v_permlane32_swap_b32 v{v}, v{tmp}")
    i("s_nop 1")
    i(f"{op} v{v}, v{v}, v{tmp}")

def allreduce_row16(op, v):
    for r in (8, 4, 2, 1):
        i("s_nop 1")
        i(f"{op}_dpp v{v}, v{v}, v{v} row_ror:{r} row_mask:0xf bank_mask:0xf")

def round_bf16(v, tmp=None):
    i(f"v_cvt_pk_bf16_f32 v{v}, v{v}, v{v}")
    i(f"v_and_b32 v{v}, 0xffff0000, v{v}")

e(f".globl {KNAME}")
e(".p2align 8")
e(f".type {KNAME},@function")
e(f"{KNAME}:")
i("s_cmp_ge_u32 s2, 256")
i("s_cbranch_scc1 L_exit")
stamp(0)
i("s_load_dwordx16 s[16:31], s[0:1], 0")
i("s_load_dwordx8 s[32:39], s[0:1], 64")
i("v_lshrrev_b32 v1, 6, v0")
i("v_and_b32 v2, 63, v0")
i("s_nop 0")
i("v_readfirstlane_b32 s3, v1")
i("s_and_b32 s4, s2, 7")
i("s_lshr_b32 s5, s2, 3")
i("s_mov_b32 s70, 0x%08x" % LOG2E)
i("s_mov_b32 s71, 0x%08x" % SCALE)
i("s_waitcnt lgkmcnt(0)")
c("SRD x: s[40:43]")
i("s_mov_b32 s40, s16")
i("s_and_b32 s41, s17, 0xffff")
i("s_movk_i32 s42, 1152")
i("s_mov_b32 s43, 0x00020000")
c("SRD ws: s[64:67]")
i("s_mov_b32 s64, s38")
i("s_and_b32 s65, s39, 0xffff")
i("s_mov_b32 s66, 0x200000")
i("s_mov_b32 s67, 0x00020000")
c("x loads")
i("v_lshlrev_b32 v1, 4, v2")
i("v_lshlrev_b32 v3, 1, v2")
i("buffer_load_dwordx4 v[16:19], v1, s[40:43], 0 offen")
i("buffer_load_ushort v20, v3, s[40:43], 0 offen offset:1024")
i("s_cmp_ge_u32 s5, 28")
i("s_cbranch_scc1 L_ffn")

def layernorm(nwait):
    i(f"s_waitcnt vmcnt({nwait})")
    for d in range(4):
        i(f"v_lshlrev_b32 v{22+2*d}, 16, v{16+d}")
        i(f"v_and_b32 v{23+2*d}, 0xffff0000, v{16+d}")
    i("v_lshlrev_b32 v30, 16, v20")
    i("v_add_f32 v31, v22, v23")
    for k in range(24, 31):
        i(f"v_add_f32 v31, v31, v{k}")
    allreduce_row16("v_add_f32", 31)
    i("s_nop 1")
    allreduce_rows("v_add_f32", 31, 32)
    i("v_mul_f32 v31, 0x%08x, v31" % f2u(1.0/576.0))
    i("v_sub_f32 v33, v22, v31")
    i("v_mul_f32 v32, v33, v33")
    for k in range(23, 31):
        i(f"v_sub_f32 v33, v{k}, v31")
        i("v_fmac_f32 v32, v33, v33")
    allreduce_row16("v_add_f32", 32)
    i("s_nop 1")
    allreduce_rows("v_add_f32", 32, 33)
    i("v_mul_f32 v32, 0x%08x, v32" % f2u(1.0/576.0))
    round_bf16(32)
    i("v_add_f32 v32, 0x%08x, v32" % f2u(1e-5))
    round_bf16(32)
    i("v_sqrt_f32 v32, v32")
    i("s_nop 0")
    round_bf16(32)
    i("v_rcp_f32 v33, v32")
    round_bf16(31)
    for k in range(22, 31):
        i(f"v_sub_f32 v{k}, v{k}, v31")
        round_bf16(k)
        i(f"v_mul_f32 v34, v{k}, v33")
        i(f"v_fma_f32 v35, -v34, v32, v{k}")
        i(f"v_fma_f32 v{k}, v35, v33, v34")
        round_bf16(k)
    i("v_lshlrev_b32 v34, 5, v2")
    i(f"ds_write_b128 v34, v[22:25] offset:{L_XN}")
    i(f"ds_write_b128 v34, v[26:29] offset:{L_XN+16}")
    i("v_lshlrev_b32 v34, 2, v2")
    i(f"ds_write_b32 v34, v30 offset:{L_XN+2048}")
    i("v_and_b32 v34, 60, v34")
    i("v_mov_b32 v35, 0")
    i(f"ds_write_b32 v34, v35 offset:{L_XN+2304}")

def proj_rows(nsteps, stg, l_src_addr_v, l_yp, final_row_s):
    for st in range(nsteps):
        i(f"ds_read_b32 v{14+st}, v{l_src_addr_v} offset:{28*st}")
    for a in range(8):
        i(f"v_mov_b32 v{6+a}, 0")
    i("s_waitcnt vmcnt(0) lgkmcnt(0)")
    for st in range(nsteps):
        for d in range(4):
            r = stg + 4*st + d
            i(f"v_lshlrev_b32 v{36+3}, 16, v{r}")
            i(f"v_and_b32 v{r}, 0xffff0000, v{r}")
            i(f"v_fmac_f32 v{6+2*d}, v{14+st}, v39")
            i(f"v_fmac_f32 v{7+2*d}, v{14+st}, v{r}")
    i("v_mul_u32_u24 v39, 2304, v37")
    i("v_lshl_add_u32 v39, v38, 5, v39")
    i(f"ds_write_b128 v39, v[6:9] offset:{l_yp}")
    i(f"ds_write_b128 v39, v[10:13] offset:{l_yp+16}")
    i("s_waitcnt lgkmcnt(0)")
    i("s_barrier")
    i("v_cmp_gt_u32 vcc, 144, v0")
    i("s_nop 1")
    i("s_and_saveexec_b64 s[72:73], vcc")
    i("s_cbranch_execz L_done")
    i("v_lshlrev_b32 v39, 4, v0")
    for r in range(7):
        i(f"ds_read_b128 v[{40+4*r}:{43+4*r}], v39 offset:{l_yp + 2304*r}")
    i("s_waitcnt lgkmcnt(0)")
    for r in range(1, 7):
        for d in range(4):
            i(f"v_add_f32 v{40+d}, v{40+d}, v{40+4*r+d}")
    i(f"buffer_store_dwordx4 v[40:43], v39, s[64:67], s{final_row_s} offen")

def thread_div72():
    i("v_mul_u32_u24 v37, 911, v0")
    i("v_lshrrev_b32 v37, 16, v37")
    i("v_mul_u32_u24 v38, 72, v37")
    i("v_sub_u32 v38, v0, v38")

c("================= attention role =================")
if MAP == 0:
    i("s_mul_i32 s6, s5, 37")
    i("s_lshr_b32 s6, s6, 8")
    i("s_mul_i32 s7, s6, 7")
    i("s_sub_u32 s7, s5, s7")
    i("s_lshl_b32 s8, s4, 2")
    i("s_add_u32 s8, s8, s6")
else:
    i("s_mul_i32 s8, s2, 9363")
    i("s_lshr_b32 s8, s8, 16")
    i("s_mul_i32 s7, s8, 7")
    i("s_sub_u32 s7, s2, s7")
c("SRD wq: s[52:55]")
i("s_mov_b32 s52, s22")
i("s_and_b32 s53, s23, 0xffff")
i("s_mov_b32 s54, %d" % (576*4096*2))
i("s_mov_b32 s55, 0x00020000")
c("SRD wo: s[56:59], num_records = (h+1)*128*1152")
i("s_mov_b32 s56, s24")
i("s_and_b32 s57, s25, 0xffff")
i("s_add_u32 s58, s8, 1")
i("s_mul_i32 s58, s58, %d" % (128*1152))
i("s_mov_b32 s59, 0x00020000")
c("WG-blocks of 128 keys: WG s takes blocks s, s+7, ...; wave w takes 16 keys of each")
i("s_cmp_lt_u32 s7, 2")
i("s_cselect_b32 s12, 19, 18")
i("s_lshl_b32 s13, s7, 15")
i("s_lshl_b32 s9, s3, 12")
i("s_add_u32 s13, s13, s9")
i("s_movk_i32 s11, 1024")
c("SRD K: s[44:47], V: s[48:51]; base += h*4MiB ; num_records = end*4096")
i("s_lshl_b32 s14, s8, 22")
i("s_add_u32 s44, s18, s14")
i("s_addc_u32 s45, s19, 0")
i("s_and_b32 s45, s45, 0xffff")
i("s_lshl_b32 s46, s11, 12")
i("s_mov_b32 s47, 0x00020000")
i("s_add_u32 s48, s20, s14")
i("s_addc_u32 s49, s21, 0")
i("s_and_b32 s49, s49, 0xffff")
i("s_mov_b32 s50, s46")
i("s_mov_b32 s51, 0x00020000")
c("wq loads: voffset = (t>>4)*8192 + h*256 + (t&15)*16 ; soffset = st*262144")
i("v_lshrrev_b32 v36, 4, v0")
i("v_lshlrev_b32 v37, 13, v36")
i("v_and_b32 v38, 15, v0")
i("v_lshl_add_u32 v37, v38, 4, v37")
i("s_lshl_b32 s15, s8, 8")
for st in range(18):
    i(f"buffer_load_dwordx4 v[{40+4*st}:{43+4*st}], v37, s[52:55], s15 offen{wS}")
    if st < 17:
        i("s_add_u32 s15, s15, 262144")
RB = 116
ntS = " nt" if NT else ""
VQ.clear(); vq("x", 2)
for st in range(18): vq(f"wq{st}")
def ld_k(slot, tag=None):
    for t in range(4):
        i(f"buffer_load_dwordx4 v[{RB+32*slot+4*t}:{RB+32*slot+4*t+3}], v1, s[44:47], s13 offen offset:{1024*t}{ntS}")
    vq(tag or "K", 4)
def ld_v(slot, tag=None):
    for t in range(4):
        i(f"buffer_load_dwordx4 v[{RB+32*slot+16+4*t}:{RB+32*slot+16+4*t+3}], v1, s[48:51], s13 offen offset:{1024*t}{ntS}")
    vq(tag or "V", 4)
def kv_prefetch(slots):
    for slot in slots:
        ld_k(slot, f"K{slot}"); ld_v(slot, f"V{slot}")
        i("s_add_u32 s13, s13, 229376")
kv_prefetch(range(NPRE))
layernorm(len(VQ) - 2); del VQ[:2]
c("xn values for this thread: xn[32*st + r], r = t>>4 (v36)")
i("v_lshlrev_b32 v36, 2, v36")
for st in range(18):
    i(f"ds_read_b32 v{14+st}, v36 offset:{L_XN + 128*st}")
for a in range(8):
    i(f"v_mov_b32 v{6+a}, 0")
i("s_waitcnt lgkmcnt(0)")
for st in range(18):
    vwait(f"wq{st}")
    for d in range(4):
        r = 40 + 4*st + d
        i(f"v_lshlrev_b32 v{32+(d&1)}, 16, v{r}")
        i(f"v_and_b32 v{r}, 0xffff0000, v{r}")
        i(f"v_fmac_f32 v{6+2*d}, v{14+st}, v{32+(d&1)}")
        i(f"v_fmac_f32 v{7+2*d}, v{14+st}, v{r}")
stamp(1)
c("reduce q partials across the 4 lane groups, then across waves through LDS")
for a in range(8):
    allreduce_rows("v_add_f32", 6+a, 32)
i("v_and_b32 v32, 15, v0")
i("v_lshlrev_b32 v32, 5, v32")
i("s_lshl_b32 s15, s3, 9")
i("v_add_u32 v32, s15, v32")
i(f"ds_write_b128 v32, v[6:9] offset:{L_QP}")
i(f"ds_write_b128 v32, v[10:13] offset:{L_QP+16}")
i("s_waitcnt lgkmcnt(0)")
i("s_barrier")
i("v_lshlrev_b32 v32, 3, v2")
for w in range(8):
    i(f"ds_read_b64 v[{14+2*w}:{15+2*w}], v32 offset:{L_QP + 512*w}")
kv_prefetch(range(NPRE, NSLOT))
i("s_waitcnt lgkmcnt(0)")
for w in range(1, 8):
    i(f"v_add_f32 v14, v14, v{14+2*w}")
    i(f"v_add_f32 v15, v15, v{15+2*w}")
i("v_cvt_pk_bf16_f32 v14, v14, v15")
i("s_lshl_b32 s15, s3, 8")
i("v_lshlrev_b32 v32, 2, v2")
i("v_add_u32 v32, s15, v32")
i(f"ds_write_b32 v32, v14 offset:{L_QB}")
i("v_and_b32 v32, 15, v0")
i("v_lshlrev_b32 v32, 4, v32")
i("v_add_u32 v32, s15, v32")
i("s_waitcnt lgkmcnt(0)")
i(f"ds_read_b128 v[2:5], v32 offset:{L_QB}")
for a in range(8):
    i(f"v_mov_b32 v{6+a}, 0")
i("v_mov_b32 v14, 0xff800000")
i("v_mov_b32 v15, 0")
i("s_mov_b32 s74, 0x%08x" % (f2u(-1.4426950408889634)))
i("s_waitcnt lgkmcnt(0)")

def block(slot, steady=False):
    K = RB + 32*slot
    V = K + 16
    n = vwait(f"K{slot}")
    if steady: assert n == 8*NSLOT-4, n
    for d in range(4):
        for t in range(4):
            src2 = "0" if d == 0 else f"v{16+t}"
            i(f"v_dot2_f32_bf16 v{16+t}, v{K+4*t+d}, v{2+d}, {src2}")
    ld_k(slot, f"K{slot}")
    for r in (8, 4, 2, 1):
        for t in range(4):
            i(f"v_add_f32_dpp v{16+t}, v{16+t}, v{16+t} row_ror:{r} row_mask:0xf bank_mask:0xf")
    def rnd():
        i("v_cvt_pk_bf16_f32 v24, v16, v17")
        i("v_cvt_pk_bf16_f32 v25, v18, v19")
        i("v_lshlrev_b32 v16, 16, v24")
        i("v_and_b32 v17, 0xffff0000, v24")
        i("v_lshlrev_b32 v18, 16, v25")
        i("v_and_b32 v19, 0xffff0000, v25")
    rnd()
    for t in range(4):
        i(f"v_mul_f32 v{16+t}, s71, v{16+t}")
    rnd()
    i("v_max3_f32 v24, v16, v17, v18")
    i("v_max3_f32 v24, v24, v19, v14")
    i("v_mul_f32 v33, s74, v24")
    i("v_fma_f32 v32, v14, s70, v33")
    for t in range(4):
        i(f"v_fma_f32 v{20+t}, v{16+t}, s70, v33")
    i("v_exp_f32 v32, v32")
    for t in range(4):
        i(f"v_exp_f32 v{20+t}, v{20+t}")
    i("v_mov_b32 v14, v24")
    i("v_fma_f32 v15, v15, v32, v20")
    i("v_add_f32 v24, v21, v22")
    i("v_add_f32 v15, v15, v23")
    i("v_add_f32 v15, v15, v24")
    for a in range(8):
        i(f"v_mul_f32 v{6+a}, v{6+a}, v32")
    n = vwait(f"V{slot}")
    if steady: assert n == 8*NSLOT-4, n
    for t in range(4):
        for d in range(4):
            u = 24 + 2*(d & 1)
            i(f"v_lshlrev_b32 v{u}, 16, v{V+4*t+d}")
            i(f"v_and_b32 v{u+1}, 0xffff0000, v{V+4*t+d}")
            i(f"v_fmac_f32 v{6+2*d}, v{20+t}, v{u}")
            i(f"v_fmac_f32 v{7+2*d}, v{20+t}, v{u+1}")
    ld_v(slot, f"V{slot}")
    i("s_add_u32 s13, s13, 229376")

stamp(2)
c("round 1")
for slot in range(NSLOT):
    block(slot)
c("wo loads into staging (issued now, consumed at the end)")
thread_div72()
i("v_lshlrev_b32 v39, 4, v0")
i("v_cmp_gt_u32 vcc, 504, v0")
i("v_mov_b32 v35, 0x80000000")
i("s_nop 1")
i("v_cndmask_b32 v39, v35, v39, vcc")
i("s_mul_i32 s15, s8, %d" % (128*1152))
for st in range(19):
    i(f"buffer_load_dwordx4 v[{40+4*st}:{43+4*st}], v39, s[56:59], s15 offen{wS}")
    if st < 18:
        i("s_add_u32 s15, s15, 8064")
vq("wo", 19)
c("round 2")
for slot in range(NSLOT):
    block(slot)
i(f"s_sub_u32 s12, s12, {2*NSLOT}")
stamp(3)
e("L_loop:")
for slot in range(NSLOT):
    block(slot, True)
    i("s_sub_u32 s12, s12, 1")
    i("s_cmp_eq_u32 s12, 0")
    if slot < NSLOT-1:
        i("s_cbranch_scc1 L_loop_done")
    else:
        i("s_cbranch_scc0 L_loop")
e("L_loop_done:")
stamp(4)
i("s_waitcnt vmcnt(0)")
c("merge the 4 lane groups of this wave")
i("v_mov_b32 v16, v14")
allreduce_rows("v_max_f32", 16, 32)
i("v_sub_f32 v17, v14, v16")
i("v_mul_f32 v17, s70, v17")
i("v_exp_f32 v17, v17")
i("s_nop 0")
i("v_mul_f32 v15, v15, v17")
for a in range(8):
    i(f"v_mul_f32 v{6+a}, v{6+a}, v17")
allreduce_rows("v_add_f32", 15, 32)
for a in range(8):
    allreduce_rows("v_add_f32", 6+a, 32)
i("v_and_b32 v32, 15, v0")
i("v_lshlrev_b32 v32, 5, v32")
i("s_lshl_b32 s15, s3, 9")
i("v_add_u32 v32, s15, v32")
i(f"ds_write_b128 v32, v[6:9] offset:{L_OP}")
i(f"ds_write_b128 v32, v[10:13] offset:{L_OP+16}")
i("s_lshl_b32 s15, s3, 3")
i("v_mov_b32 v32, s15")
i("v_mov_b32 v17, v15")
i(f"ds_write_b64 v32, v[16:17] offset:{L_ML}")
i("s_waitcnt lgkmcnt(0)")
i("s_barrier")
c("every wave: combine 8 waves -> o~[128] into its own LDS area")
i("v_mov_b32 v32, 0")
for w in range(8):
    i(f"ds_read_b64 v[{16+2*w}:{17+2*w}], v32 offset:{L_ML+8*w}")
i("v_and_b32 v2, 63, v0")
i("v_lshlrev_b32 v33, 3, v2")
for w in range(8):
    i(f"ds_read_b64 v[{116+2*w}:{117+2*w}], v33 offset:{L_OP+512*w}")
i("s_waitcnt lgkmcnt(0)")
i("v_max3_f32 v14, v16, v18, v20")
i("v_max3_f32 v14, v14, v22, v24")
i("v_max3_f32 v14, v14, v26, v28")
i("v_max_f32 v14, v14, v30")
for w in range(8):
    i(f"v_sub_f32 v{16+2*w}, v{16+2*w}, v14")
    i(f"v_mul_f32 v{16+2*w}, s70, v{16+2*w}")
    i(f"v_exp_f32 v{16+2*w}, v{16+2*w}")
i("v_mov_b32 v15, 0")
i("v_mov_b32 v6, 0")
i("v_mov_b32 v7, 0")
for w in range(8):
    i(f"v_fmac_f32 v15, v{16+2*w}, v{17+2*w}")
    i(f"v_fmac_f32 v6, v{16+2*w}, v{116+2*w}")
    i(f"v_fmac_f32 v7, v{16+2*w}, v{117+2*w}")
i("s_mul_i32 s15, s3, 544")
i("v_add_u32 v33, s15, v33")
i(f"ds_write_b64 v33, v[6:7] offset:{L_OF}")
i("v_and_b32 v33, 7, v2")
i("v_lshlrev_b32 v33, 2, v33")
i("v_add_u32 v33, s15, v33")
i("v_mov_b32 v8, 0")
i(f"ds_write_b32 v33, v8 offset:{L_OF+512}")
c("store (M,L): row = h*8+s")
i("s_lshl_b32 s9, s8, 3")
i("s_add_u32 s9, s9, s7")
i("s_lshl_b32 s10, s9, 3")
i("s_add_u32 s10, s10, %d" % WS_ML)
i("v_cmp_eq_u32 vcc, 0, v0")
i("s_nop 1")
i("s_and_saveexec_b64 s[72:73], vcc")
i("s_cbranch_execz L_skip_ml")
i("v_mov_b32 v33, 0")
i("buffer_store_dwordx2 v[14:15], v33, s[64:67], s10 offen")
e("L_skip_ml:")
i("s_mov_b64 exec, s[72:73]")
i("s_mul_i32 s9, s9, 2304")
i("v_lshlrev_b32 v36, 2, v37")
i("v_add_u32 v36, s15, v36")
i(f"v_add_u32 v36, {L_OF}, v36")
i("s_waitcnt lgkmcnt(0)")
stamp(5)
proj_rows(19, 40, 36, L_YP, 9)
i("s_branch L_done")

e("L_ffn:")
c("================= FFN role: f = xcd*4 + (j-28), 144 columns =================")
i("s_lshl_b32 s8, s4, 2")
i("s_add_u32 s8, s8, s5")
i("s_sub_u32 s8, s8, 28")
c("SRD gate s[52:55], up s[60:63], down s[56:59]")
i("s_mov_b32 s52, s28")
i("s_and_b32 s53, s29, 0xffff")
i("s_mov_b32 s54, %d" % (576*4608*2))
i("s_mov_b32 s55, 0x00020000")
i("s_mov_b32 s60, s30")
i("s_and_b32 s61, s31, 0xffff")
i("s_mov_b32 s62, %d" % (576*4608*2))
i("s_mov_b32 s63, 0x00020000")
i("s_mov_b32 s56, s32")
i("s_and_b32 s57, s33, 0xffff")
i("s_add_u32 s58, s8, 1")
i("s_mul_i32 s58, s58, %d" % (144*1152))
i("s_mov_b32 s59, 0x00020000")
c("t<504: r = t/18 (v36), c = t%18 (v37); voffset = r*9216 + c*16 ; soffset = f*288 + st*258048")
i("v_mul_u32_u24 v36, 3641, v0")
i("v_lshrrev_b32 v36, 16, v36")
i("v_mul_u32_u24 v37, 18, v36")
i("v_sub_u32 v37, v0, v37")
i("v_mul_u32_u24 v38, 9216, v36")
i("v_lshl_add_u32 v38, v37, 4, v38")
i("v_cmp_gt_u32 vcc, 504, v0")
i("v_mov_b32 v35, 0x80000000")
i("s_nop 1")
i("v_cndmask_b32 v38, v35, v38, vcc")
i("s_mul_i32 s15, s8, 288")
GST, UST = 40, 124
for st in range(21):
    i(f"buffer_load_dwordx4 v[{GST+4*st}:{GST+4*st+3}], v38, s[52:55], s15 offen{wS}")
    i(f"buffer_load_dwordx4 v[{UST+4*st}:{UST+4*st+3}], v38, s[60:63], s15 offen{wS}")
    if st < 20:
        i("s_add_u32 s15, s15, 258048")
layernorm(42)
i("v_lshlrev_b32 v39, 2, v36")
for st in range(21):
    i(f"ds_read_b32 v{14+st}, v39 offset:{L_XN + 112*st}")
for a in range(8):
    i(f"v_mov_b32 v{6+a}, 0")
    i(f"v_mov_b32 v{208+a}, 0")
i("s_waitcnt lgkmcnt(0)")
for st in range(21):
    i(f"s_waitcnt vmcnt({2*(20-st)})")
    for (base, acc) in ((GST, 6), (UST, 208)):
        for d in range(4):
            r = base + 4*st + d
            i(f"v_lshlrev_b32 v35, 16, v{r}")
            i(f"v_and_b32 v{r}, 0xffff0000, v{r}")
            i(f"v_fmac_f32 v{acc+2*d}, v{14+st}, v35")
            i(f"v_fmac_f32 v{acc+1+2*d}, v{14+st}, v{r}")
stamp(1)
c("GU partials to LDS")
i("v_mul_u32_u24 v39, 576, v36")
i("v_lshl_add_u32 v39, v37, 5, v39")
i(f"ds_write_b128 v39, v[6:9] offset:{L_GU}")
i(f"ds_write_b128 v39, v[10:13] offset:{L_GU+16}")
i(f"ds_write_b128 v39, v[208:211] offset:{L_GU+16704}")
i(f"ds_write_b128 v39, v[212:215] offset:{L_GU+16704+16}")
c("down loads")
thread_div72()
i("v_lshlrev_b32 v39, 4, v0")
i("v_cmp_gt_u32 vcc, 504, v0")
i("v_mov_b32 v35, 0x80000000")
i("s_nop 1")
i("v_cndmask_b32 v39, v35, v39, vcc")
i("s_mul_i32 s15, s8, %d" % (144*1152))
for st in range(21):
    i(f"buffer_load_dwordx4 v[{40+4*st}:{43+4*st}], v39, s[56:59], s15 offen{wS}")
    if st < 20:
        i("s_add_u32 s15, s15, 8064")
i("s_waitcnt lgkmcnt(0)")
i("s_barrier")
c("t<288: sum 28 partials; addr = (t>=144)*16704 + (t%144)*4")
i("v_cmp_le_u32 vcc, 144, v0")
i("v_lshlrev_b32 v14, 2, v0")
i("v_add_u32 v15, %d, v14" % (16704 - 576))
i("s_nop 0")
i("v_cndmask_b32 v14, v14, v15, vcc")
i("v_cmp_gt_u32 vcc, 288, v0")
i("s_nop 1")
i("s_and_saveexec_b64 s[72:73], vcc")
i("s_cbranch_execz L_ffn_a")
for r in range(28):
    i(f"ds_read_b32 v{130+r}, v14 offset:{L_GU + 576*r}")
i("s_waitcnt lgkmcnt(0)")
for r in range(1, 28):
    i(f"v_add_f32 v130, v130, v{130+r}")
round_bf16(130)
i("v_lshlrev_b32 v14, 2, v0")
i(f"ds_write_b32 v14, v130 offset:{L_GS}")
e("L_ffn_a:")
i("s_mov_b64 exec, s[72:73]")
i("s_waitcnt lgkmcnt(0)")
i("s_barrier")
c("t<152: hid")
i("v_cmp_gt_u32 vcc, 152, v0")
i("s_nop 1")
i("s_and_saveexec_b64 s[72:73], vcc")
i("s_cbranch_execz L_ffn_b")
i("v_lshlrev_b32 v14, 2, v0")
i(f"ds_read_b32 v15, v14 offset:{L_GS}")
i(f"ds_read_b32 v16, v14 offset:{L_GS+576}")
i("s_waitcnt lgkmcnt(0)")
c("gelu tanh: 0.5*g*(1+tanh(c0*(g+0.044715 g^3))) = g * (1 - 1/(exp(2u)+1))")
i("v_mul_f32 v17, v15, v15")
i("v_mul_f32 v17, 0x%08x, v17" % f2u(0.044715))
i("v_fma_f32 v17, v17, v15, v15")
i("v_mul_f32 v17, 0x%08x, v17" % f2u(2.0*0.7978845608028654*1.4426950408889634))
i("v_exp_f32 v17, v17")
i("s_nop 0")
i("v_add_f32 v17, 1.0, v17")
i("v_rcp_f32 v17, v17")
i("s_nop 0")
i("v_sub_f32 v17, 1.0, v17")
i("v_mul_f32 v17, v15, v17")
round_bf16(17)
i("v_mul_f32 v17, v17, v16")
round_bf16(17)
i("v_cmp_gt_u32 vcc, 144, v0")
i("s_nop 1")
i("v_cndmask_b32 v17, 0, v17, vcc")
i(f"ds_write_b32 v14, v17 offset:{L_HID}")
e("L_ffn_b:")
i("s_mov_b64 exec, s[72:73]")
i("s_waitcnt lgkmcnt(0)")
i("s_barrier")
i("s_lshl_b32 s9, s8, 3")
i("s_add_u32 s9, s9, 7")
i("s_mul_i32 s9, s9, 2304")
i("v_lshlrev_b32 v36, 2, v37")
i(f"v_add_u32 v36, {L_HID}, v36")
stamp(5)
proj_rows(21, 40, 36, L_YP2, 9)
e("L_done:")
stamp_flush()
e("L_exit:")
i("s_endpgm")

e(".globl fin_kernel")
e(".p2align 8")
e(".type fin_kernel,@function")
e("fin_kernel:")
i("s_cmp_ge_u32 s2, 36")
i("s_cbranch_scc1 L_fdone")
i("s_load_dwordx2 s[4:5], s[0:1], 0")
i("s_load_dwordx2 s[6:7], s[0:1], 72")
i("s_load_dwordx2 s[8:9], s[0:1], 88")
if DBGS:
    i("s_memrealtime s[32:33]")
    i("s_load_dwordx2 s[36:37], s[0:1], 80")
i("s_mov_b32 s30, 0x%08x" % LOG2E)
i("v_mul_u32_u24 v1, 2304, v0")
i("v_lshlrev_b32 v2, 3, v0")
i("v_lshlrev_b32 v3, 1, v0")
i("s_lshl_b32 s3, s2, 6")
i("s_lshl_b32 s28, s2, 5")
i("s_waitcnt lgkmcnt(0)")
i("s_mov_b32 s12, s8")
i("s_and_b32 s13, s9, 0xffff")
i("s_mov_b32 s14, 0x100000")
i("s_mov_b32 s15, 0x00020000")
i("s_mov_b32 s16, s4")
i("s_and_b32 s17, s5, 0xffff")
i("s_movk_i32 s18, 1152")
i("s_mov_b32 s19, 0x00020000")
i("s_mov_b32 s20, s6")
i("s_and_b32 s21, s7, 0xffff")
i("s_movk_i32 s22, 1152")
i("s_mov_b32 s23, 0x00020000")
i("s_mov_b32 s24, %d" % WS_ML)
i("buffer_load_dwordx2 v[4:5], v2, s[12:15], s24 offen")
for d in range(4):
    i(f"buffer_load_dwordx4 v[{8+4*d}:{11+4*d}], v1, s[12:15], s3 offen offset:{16*d}")
i("buffer_load_ushort v6, v3, s[16:19], s28 offen")
i("v_and_b32 v7, 7, v0")
i("v_cmp_eq_u32 vcc, 7, v7")
i("v_mov_b32 v24, 0xff800000")
i("s_waitcnt vmcnt(5)")
i("v_cndmask_b32 v4, v4, v24, vcc")
i("v_cndmask_b32 v5, v5, 0, vcc") if False else None
i("v_mov_b32 v25, 0")
i("v_cndmask_b32 v5, v5, v25, vcc")
def red8(op, v):
    for mod in ("quad_perm:[1,0,3,2]", "quad_perm:[2,3,0,1]", "row_half_mirror"):
        i("s_nop 1")
        i(f"{op}_dpp v{v}, v{v}, v{v} {mod} row_mask:0xf bank_mask:0xf")
i("v_mov_b32 v26, v4")
red8("v_max_f32", 26)
i("v_sub_f32 v27, v4, v26")
i("v_mul_f32 v27, s30, v27")
i("v_exp_f32 v27, v27")
i("s_nop 0")
i("v_mul_f32 v28, v27, v5")
red8("v_add_f32", 28)
i("v_rcp_f32 v29, v28")
i("s_nop 0")
i("v_fma_f32 v30, -v28, v29, 1.0")
i("v_fma_f32 v29, v30, v29, v29")
i("v_mul_f32 v27, v27, v29")
i("v_mov_b32 v25, 1.0")
i("v_cndmask_b32 v27, v27, v25, vcc")
i("s_waitcnt vmcnt(1)")
for a in range(16):
    i(f"v_mul_f32 v{8+a}, v{8+a}, v27")
for a in range(16):
    i(f"v_add_f32_dpp v{8+a}, v{8+a}, v{8+a} row_ror:8 row_mask:0xf bank_mask:0xf")
i("s_nop 1")
for a in range(16):
    allreduce_rows("v_add_f32", 8+a, 31)
c("LDS [w][s][16]")
i("v_lshrrev_b32 v31, 6, v0")
i("v_lshlrev_b32 v31, 9, v31")
i("v_lshl_add_u32 v31, v7, 6, v31")
for d in range(4):
    i(f"ds_write_b128 v31, v[{8+4*d}:{11+4*d}] offset:{16*d}")
i("s_waitcnt lgkmcnt(0)")
i("s_barrier")
i("v_cmp_gt_u32 vcc, 16, v0")
i("s_nop 1")
i("s_and_saveexec_b64 s[26:27], vcc")
i("s_cbranch_execz L_fdone2")
i("v_lshlrev_b32 v31, 2, v0")
for w in range(4):
    for s in range(8):
        i(f"ds_read_b32 v{32+8*w+s}, v31 offset:{512*w+64*s}")
i("s_waitcnt lgkmcnt(0)")
first = True
for w in range(4):
    for s in range(7):
        if first:
            first = False
            continue
        i(f"v_add_f32 v32, v32, v{32+8*w+s}")
for w in range(1, 4):
    i(f"v_add_f32 v39, v39, v{39+8*w}")
round_bf16(32)
round_bf16(39)
i("s_waitcnt vmcnt(0)")
i("v_lshlrev_b32 v6, 16, v6")
i("v_add_f32 v6, v6, v32")
round_bf16(6)
i("v_add_f32 v6, v6, v39")
i("v_cvt_pk_bf16_f32 v6, v6, v6")
i("buffer_store_short v6, v3, s[20:23], s28 offen")
e("L_fdone2:")
if DBGS:
    i("s_mov_b64 exec, -1")
    i("s_memrealtime s[34:35]")
    i("s_waitcnt lgkmcnt(0)")
    i("s_sub_u32 s36, s36, 512")
    i("s_subb_u32 s37, s37, 0")
    i("s_and_b32 s37, s37, 0xffff")
    i("s_movk_i32 s38, 256")
    i("s_mov_b32 s39, 0x00020000")
    i("s_not_b32 s32, s32")
    i("v_mov_b32 v60, 0")
    i("v_mov_b32 v61, s32")
    i("buffer_atomic_umax v61, v60, s[36:39], 0 offen offset:8")
    i("v_mov_b32 v61, s34")
    i("buffer_atomic_umax v61, v60, s[36:39], 0 offen offset:12")
e("L_fdone:")
i("s_endpgm")

e(""".section .rodata,"a"
.p2align 6
.amdhsa_kernel %s
  .amdhsa_next_free_vgpr 248
  .amdhsa_next_free_sgpr 100
  .amdhsa_accum_offset 248
  .amdhsa_group_segment_fixed_size 0
  .amdhsa_kernarg_size 96
  .amdhsa_user_sgpr_count 2
  .amdhsa_user_sgpr_kernarg_segment_ptr 1
  .amdhsa_system_sgpr_workgroup_id_x 1
.end_amdhsa_kernel
.p2align 6
.amdhsa_kernel fin_kernel
  .amdhsa_next_free_vgpr 64
  .amdhsa_next_free_sgpr 40
  .amdhsa_accum_offset 64
  .amdhsa_group_segment_fixed_size 0
  .amdhsa_kernarg_size 96
  .amdhsa_user_sgpr_count 2
  .amdhsa_user_sgpr_kernarg_segment_ptr 1
  .amdhsa_system_sgpr_workgroup_id_x 1
.end_amdhsa_kernel""" % KNAME)

path = sys.argv[1] if len(sys.argv) > 1 else "parallel_sum__mha_block_cached__geglu_ffn__decode.s"
open(path, "w").write("\n".join(out) + "\n")
print("wrote", path, len(out), "lines")
```

```python
import sys, os

MAP = int(os.environ.get("MAP","0"))
import os
NSLOT = int(os.environ.get('NSLOT', '1'))
NPRE = min(NSLOT, int(os.environ.get('NPRE', '1')))
WNT = int(os.environ.get('WNT', '0'))
NT = bool(int(os.environ.get("KVNT","1")))
out = []
wS = ' nt' if WNT else ''
def e(s=""):
    out.append(s)
def c(s):
    out.append("    ; " + s)
def i(s):
    out.append("    " + s)

VQ = []
def vq(tag, n=1):
    for _ in range(n): VQ.append(tag)
def vwait(tag):
    idxs = [k for k, t in enumerate(VQ) if t == tag]
    assert idxs, tag
    n = len(VQ) - 1 - idxs[-1]
    i(f"s_waitcnt vmcnt({n})")
    del VQ[:idxs[-1]+1]
    return n
STAMP = (len(sys.argv) > 2 and sys.argv[2] == "stamp")
DBGS = (len(sys.argv) > 2 and sys.argv[2] == "dbg")
STAMP = STAMP or DBGS
def stamp(idx):
    if not STAMP: return
    i(f"s_memrealtime s[{80+2*idx}:{81+2*idx}]")
def stamp_flush():
    if not STAMP: return
    i("s_mov_b64 exec, -1")
    stamp(7)
    i("s_waitcnt lgkmcnt(0)")
    if DBGS:
        i("s_mov_b32 s76, s36")
        i("s_and_b32 s77, s37, 0xffff")
        i("s_movk_i32 s78, 256")
        i("s_mov_b32 s79, 0x00020000")
        i("v_mov_b32 v246, 0")
        i("s_not_b32 s80, s80")
        for (slot, idx) in ((0, 0), (1, 7), (4, 2), (5, 4), (6, 1)):
            i(f"v_mov_b32 v247, s{80+2*idx}")
            i(f"buffer_atomic_umax v247, v246, s[76:79], 0 offen offset:{4*slot}")
        return
    i("s_lshl_b32 s78, s2, 9")
    i("s_lshl_b32 s79, s3, 6")
    i("s_add_u32 s78, s78, s79")
    i("s_add_u32 s78, s78, 0x100000")
    i("v_mov_b32 v246, 0")
    for idx in range(8):
        i(f"v_mov_b32 v247, s{80+2*idx}")
        i(f"buffer_store_dword v247, v246, s[64:67], s78 offen offset:{4*idx}")
KNAME = "parallel_sum__mha_block_cached__geglu_ffn__decode_kernel"

assert all((t*911)>>16 == t//72 for t in range(512))
assert all((t*3641)>>16 == t//18 for t in range(512))
assert all((W*128*9363)>>16 == (W*128)//7 for W in range(57))
assert all((w*9363)>>16 == w//7 for w in range(256))
assert all((j*37)>>8 == j//7 for j in range(28))

LOG2E = 0x3fb8aa3b
SCALE = 0x3db504f3
import struct
def f2u(x): return struct.unpack("<I", struct.pack("<f", x))[0]
assert f2u(0.08838834764831845) == SCALE
assert f2u(1.4426950408889634) == LOG2E

L_XN = 0
L_QP = 2560
L_QB = 6656
L_OP = 8704
L_ML = 12800
L_OF = 12928
L_YP = 17408
L_GU = 2560
L_GS = 36096
L_HID = 37248
L_YP2 = 2560
LDS_BYTES = 38912

WS_ML = 0x90000

hdr = """; Kernarg layout for this problem (96 bytes, ptrs only, base s[0:1]):
;   offset   0: d_in[0] A_x  shape=(1, 1, 576) dtype=bfloat16
;   offset   8: d_in[1] A_k_cache  shape=(1, 32, 16384, 128) dtype=bfloat16
;   offset  16: d_in[2] A_v_cache  shape=(1, 32, 16384, 128) dtype=bfloat16
;   offset  24: d_in[3] A_wq  shape=(576, 4096) dtype=bfloat16
;   offset  32: d_in[4] A_wo  shape=(4096, 576) dtype=bfloat16
;   offset  40: d_in[5] B_x  shape=(1, 1, 576) dtype=bfloat16
;   offset  48: d_in[6] B_w_gate  shape=(576, 4608) dtype=bfloat16
;   offset  56: d_in[7] B_w_up  shape=(576, 4608) dtype=bfloat16
;   offset  64: d_in[8] B_w_down  shape=(4608, 576) dtype=bfloat16
;   offset  72: d_out     shape=(1, 1, 576) dtype=bfloat16 (2 bytes/elem)
;   offset  80: d_debug   256 bytes
;   offset  88: d_ws      536870912 bytes workspace
; @launch kernel=%s grid=(256,1,1) block=(512,1,1) lds=%d
; @launch kernel=fin_kernel grid=(36,1,1) block=(256,1,1) lds=2048
.amdgcn_target "amdgcn-amd-amdhsa--gfx950"
.text
""" % (KNAME, LDS_BYTES)
e(hdr.rstrip("\n"))

def allreduce_rows(op, v, tmp):
    i(f"v_mov_b32 v{tmp}, v{v}")
    i("s_nop 1")
    i(f"v_permlane16_swap_b32 v{v}, v{tmp}")
    i("s_nop 1")
    i(f"{op} v{v}, v{v}, v{tmp}")
    i(f"v_mov_b32 v{tmp}, v{v}")
    i("s_nop 1")
    i(f"v_permlane32_swap_b32 v{v}, v{tmp}")
    i("s_nop 1")
    i(f"{op} v{v}, v{v}, v{tmp}")

def allreduce_row16(op, v):
    for r in (8, 4, 2, 1):
        i("s_nop 1")
        i(f"{op}_dpp v{v}, v{v}, v{v} row_ror:{r} row_mask:0xf bank_mask:0xf")

def round_bf16(v, tmp=None):
    i(f"v_cvt_pk_bf16_f32 v{v}, v{v}, v{v}")
    i(f"v_and_b32 v{v}, 0xffff0000, v{v}")

e(f".globl {KNAME}")
e(".p2align 8")
e(f".type {KNAME},@function")
e(f"{KNAME}:")
i("s_cmp_ge_u32 s2, 256")
i("s_cbranch_scc1 L_exit")
stamp(0)
i("s_load_dwordx16 s[16:31], s[0:1], 0")
i("s_load_dwordx8 s[32:39], s[0:1], 64")
i("v_lshrrev_b32 v1, 6, v0")
i("v_and_b32 v2, 63, v0")
i("s_nop 0")
i("v_readfirstlane_b32 s3, v1")
i("s_and_b32 s4, s2, 7")
i("s_lshr_b32 s5, s2, 3")
i("s_mov_b32 s70, 0x%08x" % LOG2E)
i("s_mov_b32 s71, 0x%08x" % SCALE)
i("s_waitcnt lgkmcnt(0)")
c("SRD x: s[40:43]")
i("s_mov_b32 s40, s16")
i("s_and_b32 s41, s17, 0xffff")
i("s_movk_i32 s42, 1152")
i("s_mov_b32 s43, 0x00020000")
c("SRD ws: s[64:67]")
i("s_mov_b32 s64, s38")
i("s_and_b32 s65, s39, 0xffff")
i("s_mov_b32 s66, 0x200000")
i("s_mov_b32 s67, 0x00020000")
c("x loads")
i("v_lshlrev_b32 v1, 4, v2")
i("v_lshlrev_b32 v3, 1, v2")
i("buffer_load_dwordx4 v[16:19], v1, s[40:43], 0 offen")
i("buffer_load_ushort v20, v3, s[40:43], 0 offen offset:1024")
i("s_cmp_ge_u32 s5, 28")
i("s_cbranch_scc1 L_ffn")

def layernorm(nwait):
    i(f"s_waitcnt vmcnt({nwait})")
    for d in range(4):
        i(f"v_lshlrev_b32 v{22+2*d}, 16, v{16+d}")
        i(f"v_and_b32 v{23+2*d}, 0xffff0000, v{16+d}")
    i("v_lshlrev_b32 v30, 16, v20")
    i("v_add_f32 v31, v22, v23")
    for k in range(24, 31):
        i(f"v_add_f32 v31, v31, v{k}")
    allreduce_row16("v_add_f32", 31)
    i("s_nop 1")
    allreduce_rows("v_add_f32", 31, 32)
    i("v_mul_f32 v31, 0x%08x, v31" % f2u(1.0/576.0))
    i("v_sub_f32 v33, v22, v31")
    i("v_mul_f32 v32, v33, v33")
    for k in range(23, 31):
        i(f"v_sub_f32 v33, v{k}, v31")
        i("v_fmac_f32 v32, v33, v33")
    allreduce_row16("v_add_f32", 32)
    i("s_nop 1")
    allreduce_rows("v_add_f32", 32, 33)
    i("v_mul_f32 v32, 0x%08x, v32" % f2u(1.0/576.0))
    round_bf16(32)
    i("v_add_f32 v32, 0x%08x, v32" % f2u(1e-5))
    round_bf16(32)
    i("v_sqrt_f32 v32, v32")
    i("s_nop 0")
    round_bf16(32)
    i("v_rcp_f32 v33, v32")
    round_bf16(31)
    for k in range(22, 31):
        i(f"v_sub_f32 v{k}, v{k}, v31")
        round_bf16(k)
        i(f"v_mul_f32 v34, v{k}, v33")
        i(f"v_fma_f32 v35, -v34, v32, v{k}")
        i(f"v_fma_f32 v{k}, v35, v33, v34")
        round_bf16(k)
    i("v_lshlrev_b32 v34, 5, v2")
    i(f"ds_write_b128 v34, v[22:25] offset:{L_XN}")
    i(f"ds_write_b128 v34, v[26:29] offset:{L_XN+16}")
    i("v_lshlrev_b32 v34, 2, v2")
    i(f"ds_write_b32 v34, v30 offset:{L_XN+2048}")
    i("v_and_b32 v34, 60, v34")
    i("v_mov_b32 v35, 0")
    i(f"ds_write_b32 v34, v35 offset:{L_XN+2304}")

def proj_rows(nsteps, stg, l_src_addr_v, l_yp, final_row_s):
    for st in range(nsteps):
        i(f"ds_read_b32 v{14+st}, v{l_src_addr_v} offset:{28*st}")
    for a in range(8):
        i(f"v_mov_b32 v{6+a}, 0")
    i("s_waitcnt vmcnt(0) lgkmcnt(0)")
    for st in range(nsteps):
        for d in range(4):
            r = stg + 4*st + d
            i(f"v_lshlrev_b32 v{36+3}, 16, v{r}")
            i(f"v_and_b32 v{r}, 0xffff0000, v{r}")
            i(f"v_fmac_f32 v{6+2*d}, v{14+st}, v39")
            i(f"v_fmac_f32 v{7+2*d}, v{14+st}, v{r}")
    i("v_mul_u32_u24 v39, 2304, v37")
    i("v_lshl_add_u32 v39, v38, 5, v39")
    i(f"ds_write_b128 v39, v[6:9] offset:{l_yp}")
    i(f"ds_write_b128 v39, v[10:13] offset:{l_yp+16}")
    i("s_waitcnt lgkmcnt(0)")
    i("s_barrier")
    i("v_cmp_gt_u32 vcc, 144, v0")
    i("s_nop 1")
    i("s_and_saveexec_b64 s[72:73], vcc")
    i("s_cbranch_execz L_done")
    i("v_lshlrev_b32 v39, 4, v0")
    for r in range(7):
        i(f"ds_read_b128 v[{40+4*r}:{43+4*r}], v39 offset:{l_yp + 2304*r}")
    i("s_waitcnt lgkmcnt(0)")
    for r in range(1, 7):
        for d in range(4):
            i(f"v_add_f32 v{40+d}, v{40+d}, v{40+4*r+d}")
    i(f"buffer_store_dwordx4 v[40:43], v39, s[64:67], s{final_row_s} offen")

def thread_div72():
    i("v_mul_u32_u24 v37, 911, v0")
    i("v_lshrrev_b32 v37, 16, v37")
    i("v_mul_u32_u24 v38, 72, v37")
    i("v_sub_u32 v38, v0, v38")

c("================= attention role =================")
if MAP == 0:
    i("s_mul_i32 s6, s5, 37")
    i("s_lshr_b32 s6, s6, 8")
    i("s_mul_i32 s7, s6, 7")
    i("s_sub_u32 s7, s5, s7")
    i("s_lshl_b32 s8, s4, 2")
    i("s_add_u32 s8, s8, s6")
else:
    i("s_mul_i32 s8, s2, 9363")
    i("s_lshr_b32 s8, s8, 16")
    i("s_mul_i32 s7, s8, 7")
    i("s_sub_u32 s7, s2, s7")
c("SRD wq: s[52:55]")
i("s_mov_b32 s52, s22")
i("s_and_b32 s53, s23, 0xffff")
i("s_mov_b32 s54, %d" % (576*4096*2))
i("s_mov_b32 s55, 0x00020000")
c("SRD wo: s[56:59], num_records = (h+1)*128*1152")
i("s_mov_b32 s56, s24")
i("s_and_b32 s57, s25, 0xffff")
i("s_add_u32 s58, s8, 1")
i("s_mul_i32 s58, s58, %d" % (128*1152))
i("s_mov_b32 s59, 0x00020000")
c("WG-blocks of 128 keys: WG s takes blocks s, s+7, ...; wave w takes 16 keys of each")
i("s_cmp_lt_u32 s7, 2")
i("s_cselect_b32 s12, 19, 18")
i("s_lshl_b32 s13, s7, 15")
i("s_lshl_b32 s9, s3, 12")
i("s_add_u32 s13, s13, s9")
i("s_movk_i32 s11, 1024")
c("SRD K: s[44:47], V: s[48:51]; base += h*4MiB ; num_records = end*4096")
i("s_lshl_b32 s14, s8, 22")
i("s_add_u32 s44, s18, s14")
i("s_addc_u32 s45, s19, 0")
i("s_and_b32 s45, s45, 0xffff")
i("s_lshl_b32 s46, s11, 12")
i("s_mov_b32 s47, 0x00020000")
i("s_add_u32 s48, s20, s14")
i("s_addc_u32 s49, s21, 0")
i("s_and_b32 s49, s49, 0xffff")
i("s_mov_b32 s50, s46")
i("s_mov_b32 s51, 0x00020000")
c("wq loads: voffset = (t>>4)*8192 + h*256 + (t&15)*16 ; soffset = st*262144")
i("v_lshrrev_b32 v36, 4, v0")
i("v_lshlrev_b32 v37, 13, v36")
i("v_and_b32 v38, 15, v0")
i("v_lshl_add_u32 v37, v38, 4, v37")
i("s_lshl_b32 s15, s8, 8")
for st in range(18):
    i(f"buffer_load_dwordx4 v[{40+4*st}:{43+4*st}], v37, s[52:55], s15 offen{wS}")
    if st < 17:
        i("s_add_u32 s15, s15, 262144")
RB = 116
ntK = " nt" if int(os.environ.get("KNT", "1")) else ""
ntV = " nt" if int(os.environ.get("VNT", "1")) else ""
VQ.clear(); vq("x", 2)
for st in range(18): vq(f"wq{st}")
def ld_k(slot, tag=None):
    for t in range(4):
        i(f"buffer_load_dwordx4 v[{RB+32*slot+4*t}:{RB+32*slot+4*t+3}], v1, s[44:47], s13 offen offset:{1024*t}{ntK}")
    vq(tag or "K", 4)
def ld_v(slot, tag=None):
    for t in range(4):
        i(f"buffer_load_dwordx4 v[{RB+32*slot+16+4*t}:{RB+32*slot+16+4*t+3}], v1, s[48:51], s13 offen offset:{1024*t}{ntV}")
    vq(tag or "V", 4)
def kv_prefetch(slots):
    for slot in slots:
        ld_k(slot, f"K{slot}"); ld_v(slot, f"V{slot}")
        i("s_add_u32 s13, s13, 229376")
kv_prefetch(range(NPRE))
layernorm(len(VQ) - 2); del VQ[:2]
c("xn values for this thread: xn[32*st + r], r = t>>4 (v36)")
i("v_lshlrev_b32 v36, 2, v36")
for st in range(18):
    i(f"ds_read_b32 v{14+st}, v36 offset:{L_XN + 128*st}")
for a in range(8):
    i(f"v_mov_b32 v{6+a}, 0")
i("s_waitcnt lgkmcnt(0)")
for st in range(18):
    vwait(f"wq{st}")
    for d in range(4):
        r = 40 + 4*st + d
        i(f"v_lshlrev_b32 v{32+(d&1)}, 16, v{r}")
        i(f"v_and_b32 v{r}, 0xffff0000, v{r}")
        i(f"v_fmac_f32 v{6+2*d}, v{14+st}, v{32+(d&1)}")
        i(f"v_fmac_f32 v{7+2*d}, v{14+st}, v{r}")
stamp(1)
c("reduce q partials across the 4 lane groups, then across waves through LDS")
for a in range(8):
    allreduce_rows("v_add_f32", 6+a, 32)
i("v_and_b32 v32, 15, v0")
i("v_lshlrev_b32 v32, 5, v32")
i("s_lshl_b32 s15, s3, 9")
i("v_add_u32 v32, s15, v32")
i(f"ds_write_b128 v32, v[6:9] offset:{L_QP}")
i(f"ds_write_b128 v32, v[10:13] offset:{L_QP+16}")
i("s_waitcnt lgkmcnt(0)")
i("s_barrier")
i("v_lshlrev_b32 v32, 3, v2")
for w in range(8):
    i(f"ds_read_b64 v[{14+2*w}:{15+2*w}], v32 offset:{L_QP + 512*w}")
kv_prefetch(range(NPRE, NSLOT))
i("s_waitcnt lgkmcnt(0)")
for w in range(1, 8):
    i(f"v_add_f32 v14, v14, v{14+2*w}")
    i(f"v_add_f32 v15, v15, v{15+2*w}")
i("v_cvt_pk_bf16_f32 v14, v14, v15")
i("s_lshl_b32 s15, s3, 8")
i("v_lshlrev_b32 v32, 2, v2")
i("v_add_u32 v32, s15, v32")
i(f"ds_write_b32 v32, v14 offset:{L_QB}")
i("v_and_b32 v32, 15, v0")
i("v_lshlrev_b32 v32, 4, v32")
i("v_add_u32 v32, s15, v32")
i("s_waitcnt lgkmcnt(0)")
i(f"ds_read_b128 v[2:5], v32 offset:{L_QB}")
for a in range(8):
    i(f"v_mov_b32 v{6+a}, 0")
i("v_mov_b32 v14, 0xff800000")
i("v_mov_b32 v15, 0")
i("s_mov_b32 s74, 0x%08x" % (f2u(-1.4426950408889634)))
i("s_waitcnt lgkmcnt(0)")

def block(slot, steady=False):
    K = RB + 32*slot
    V = K + 16
    n = vwait(f"K{slot}")
    if steady: assert n == 8*NSLOT-4, n
    for d in range(4):
        for t in range(4):
            src2 = "0" if d == 0 else f"v{16+t}"
            i(f"v_dot2_f32_bf16 v{16+t}, v{K+4*t+d}, v{2+d}, {src2}")
    ld_k(slot, f"K{slot}")
    for r in (8, 4, 2, 1):
        for t in range(4):
            i(f"v_add_f32_dpp v{16+t}, v{16+t}, v{16+t} row_ror:{r} row_mask:0xf bank_mask:0xf")
    def rnd():
        i("v_cvt_pk_bf16_f32 v24, v16, v17")
        i("v_cvt_pk_bf16_f32 v25, v18, v19")
        i("v_lshlrev_b32 v16, 16, v24")
        i("v_and_b32 v17, 0xffff0000, v24")
        i("v_lshlrev_b32 v18, 16, v25")
        i("v_and_b32 v19, 0xffff0000, v25")
    rnd()
    for t in range(4):
        i(f"v_mul_f32 v{16+t}, s71, v{16+t}")
    rnd()
    i("v_max3_f32 v24, v16, v17, v18")
    i("v_max3_f32 v24, v24, v19, v14")
    i("v_mul_f32 v33, s74, v24")
    i("v_fma_f32 v32, v14, s70, v33")
    for t in range(4):
        i(f"v_fma_f32 v{20+t}, v{16+t}, s70, v33")
    i("v_exp_f32 v32, v32")
    for t in range(4):
        i(f"v_exp_f32 v{20+t}, v{20+t}")
    i("v_mov_b32 v14, v24")
    i("v_fma_f32 v15, v15, v32, v20")
    i("v_add_f32 v24, v21, v22")
    i("v_add_f32 v15, v15, v23")
    i("v_add_f32 v15, v15, v24")
    for a in range(8):
        i(f"v_mul_f32 v{6+a}, v{6+a}, v32")
    n = vwait(f"V{slot}")
    if steady: assert n == 8*NSLOT-4, n
    for t in range(4):
        for d in range(4):
            u = 24 + 2*(d & 1)
            i(f"v_lshlrev_b32 v{u}, 16, v{V+4*t+d}")
            i(f"v_and_b32 v{u+1}, 0xffff0000, v{V+4*t+d}")
            i(f"v_fmac_f32 v{6+2*d}, v{20+t}, v{u}")
            i(f"v_fmac_f32 v{7+2*d}, v{20+t}, v{u+1}")
    ld_v(slot, f"V{slot}")
    i("s_add_u32 s13, s13, 229376")

stamp(2)
c("round 1")
for slot in range(NSLOT):
    block(slot)
c("wo loads into staging (issued now, consumed at the end)")
thread_div72()
i("v_lshlrev_b32 v39, 4, v0")
i("v_cmp_gt_u32 vcc, 504, v0")
i("v_mov_b32 v35, 0x80000000")
i("s_nop 1")
i("v_cndmask_b32 v39, v35, v39, vcc")
i("s_mul_i32 s15, s8, %d" % (128*1152))
for st in range(19):
    i(f"buffer_load_dwordx4 v[{40+4*st}:{43+4*st}], v39, s[56:59], s15 offen{wS}")
    if st < 18:
        i("s_add_u32 s15, s15, 8064")
vq("wo", 19)
c("round 2")
for slot in range(NSLOT):
    block(slot)
i(f"s_sub_u32 s12, s12, {2*NSLOT}")
stamp(3)
e("L_loop:")
for slot in range(NSLOT):
    block(slot, True)
    i("s_sub_u32 s12, s12, 1")
    i("s_cmp_eq_u32 s12, 0")
    if slot < NSLOT-1:
        i("s_cbranch_scc1 L_loop_done")
    else:
        i("s_cbranch_scc0 L_loop")
e("L_loop_done:")
stamp(4)
i("s_waitcnt vmcnt(0)")
c("merge the 4 lane groups of this wave")
i("v_mov_b32 v16, v14")
allreduce_rows("v_max_f32", 16, 32)
i("v_sub_f32 v17, v14, v16")
i("v_mul_f32 v17, s70, v17")
i("v_exp_f32 v17, v17")
i("s_nop 0")
i("v_mul_f32 v15, v15, v17")
for a in range(8):
    i(f"v_mul_f32 v{6+a}, v{6+a}, v17")
allreduce_rows("v_add_f32", 15, 32)
for a in range(8):
    allreduce_rows("v_add_f32", 6+a, 32)
i("v_and_b32 v32, 15, v0")
i("v_lshlrev_b32 v32, 5, v32")
i("s_lshl_b32 s15, s3, 9")
i("v_add_u32 v32, s15, v32")
i(f"ds_write_b128 v32, v[6:9] offset:{L_OP}")
i(f"ds_write_b128 v32, v[10:13] offset:{L_OP+16}")
i("s_lshl_b32 s15, s3, 3")
i("v_mov_b32 v32, s15")
i("v_mov_b32 v17, v15")
i(f"ds_write_b64 v32, v[16:17] offset:{L_ML}")
i("s_waitcnt lgkmcnt(0)")
i("s_barrier")
c("every wave: combine 8 waves -> o~[128] into its own LDS area")
i("v_mov_b32 v32, 0")
for w in range(8):
    i(f"ds_read_b64 v[{16+2*w}:{17+2*w}], v32 offset:{L_ML+8*w}")
i("v_and_b32 v2, 63, v0")
i("v_lshlrev_b32 v33, 3, v2")
for w in range(8):
    i(f"ds_read_b64 v[{116+2*w}:{117+2*w}], v33 offset:{L_OP+512*w}")
i("s_waitcnt lgkmcnt(0)")
i("v_max3_f32 v14, v16, v18, v20")
i("v_max3_f32 v14, v14, v22, v24")
i("v_max3_f32 v14, v14, v26, v28")
i("v_max_f32 v14, v14, v30")
for w in range(8):
    i(f"v_sub_f32 v{16+2*w}, v{16+2*w}, v14")
    i(f"v_mul_f32 v{16+2*w}, s70, v{16+2*w}")
    i(f"v_exp_f32 v{16+2*w}, v{16+2*w}")
i("v_mov_b32 v15, 0")
i("v_mov_b32 v6, 0")
i("v_mov_b32 v7, 0")
for w in range(8):
    i(f"v_fmac_f32 v15, v{16+2*w}, v{17+2*w}")
    i(f"v_fmac_f32 v6, v{16+2*w}, v{116+2*w}")
    i(f"v_fmac_f32 v7, v{16+2*w}, v{117+2*w}")
i("s_mul_i32 s15, s3, 544")
i("v_add_u32 v33, s15, v33")
i(f"ds_write_b64 v33, v[6:7] offset:{L_OF}")
i("v_and_b32 v33, 7, v2")
i("v_lshlrev_b32 v33, 2, v33")
i("v_add_u32 v33, s15, v33")
i("v_mov_b32 v8, 0")
i(f"ds_write_b32 v33, v8 offset:{L_OF+512}")
c("store (M,L): row = h*8+s")
i("s_lshl_b32 s9, s8, 3")
i("s_add_u32 s9, s9, s7")
i("s_lshl_b32 s10, s9, 3")
i("s_add_u32 s10, s10, %d" % WS_ML)
i("v_cmp_eq_u32 vcc, 0, v0")
i("s_nop 1")
i("s_and_saveexec_b64 s[72:73], vcc")
i("s_cbranch_execz L_skip_ml")
i("v_mov_b32 v33, 0")
i("buffer_store_dwordx2 v[14:15], v33, s[64:67], s10 offen")
e("L_skip_ml:")
i("s_mov_b64 exec, s[72:73]")
i("s_mul_i32 s9, s9, 2304")
i("v_lshlrev_b32 v36, 2, v37")
i("v_add_u32 v36, s15, v36")
i(f"v_add_u32 v36, {L_OF}, v36")
i("s_waitcnt lgkmcnt(0)")
stamp(5)
proj_rows(19, 40, 36, L_YP, 9)
i("s_branch L_done")

e("L_ffn:")
c("================= FFN role: f = xcd*4 + (j-28), 144 columns =================")
i("s_lshl_b32 s8, s4, 2")
i("s_add_u32 s8, s8, s5")
i("s_sub_u32 s8, s8, 28")
c("SRD gate s[52:55], up s[60:63], down s[56:59]")
i("s_mov_b32 s52, s28")
i("s_and_b32 s53, s29, 0xffff")
i("s_mov_b32 s54, %d" % (576*4608*2))
i("s_mov_b32 s55, 0x00020000")
i("s_mov_b32 s60, s30")
i("s_and_b32 s61, s31, 0xffff")
i("s_mov_b32 s62, %d" % (576*4608*2))
i("s_mov_b32 s63, 0x00020000")
i("s_mov_b32 s56, s32")
i("s_and_b32 s57, s33, 0xffff")
i("s_add_u32 s58, s8, 1")
i("s_mul_i32 s58, s58, %d" % (144*1152))
i("s_mov_b32 s59, 0x00020000")
c("t<504: r = t/18 (v36), c = t%18 (v37); voffset = r*9216 + c*16 ; soffset = f*288 + st*258048")
i("v_mul_u32_u24 v36, 3641, v0")
i("v_lshrrev_b32 v36, 16, v36")
i("v_mul_u32_u24 v37, 18, v36")
i("v_sub_u32 v37, v0, v37")
i("v_mul_u32_u24 v38, 9216, v36")
i("v_lshl_add_u32 v38, v37, 4, v38")
i("v_cmp_gt_u32 vcc, 504, v0")
i("v_mov_b32 v35, 0x80000000")
i("s_nop 1")
i("v_cndmask_b32 v38, v35, v38, vcc")
i("s_mul_i32 s15, s8, 288")
GST, UST = 40, 124
for st in range(21):
    i(f"buffer_load_dwordx4 v[{GST+4*st}:{GST+4*st+3}], v38, s[52:55], s15 offen{wS}")
    i(f"buffer_load_dwordx4 v[{UST+4*st}:{UST+4*st+3}], v38, s[60:63], s15 offen{wS}")
    if st < 20:
        i("s_add_u32 s15, s15, 258048")
layernorm(42)
i("v_lshlrev_b32 v39, 2, v36")
for st in range(21):
    i(f"ds_read_b32 v{14+st}, v39 offset:{L_XN + 112*st}")
for a in range(8):
    i(f"v_mov_b32 v{6+a}, 0")
    i(f"v_mov_b32 v{208+a}, 0")
i("s_waitcnt lgkmcnt(0)")
for st in range(21):
    i(f"s_waitcnt vmcnt({2*(20-st)})")
    for (base, acc) in ((GST, 6), (UST, 208)):
        for d in range(4):
            r = base + 4*st + d
            i(f"v_lshlrev_b32 v35, 16, v{r}")
            i(f"v_and_b32 v{r}, 0xffff0000, v{r}")
            i(f"v_fmac_f32 v{acc+2*d}, v{14+st}, v35")
            i(f"v_fmac_f32 v{acc+1+2*d}, v{14+st}, v{r}")
stamp(1)
c("GU partials to LDS")
i("v_mul_u32_u24 v39, 576, v36")
i("v_lshl_add_u32 v39, v37, 5, v39")
i(f"ds_write_b128 v39, v[6:9] offset:{L_GU}")
i(f"ds_write_b128 v39, v[10:13] offset:{L_GU+16}")
i(f"ds_write_b128 v39, v[208:211] offset:{L_GU+16704}")
i(f"ds_write_b128 v39, v[212:215] offset:{L_GU+16704+16}")
c("down loads")
thread_div72()
i("v_lshlrev_b32 v39, 4, v0")
i("v_cmp_gt_u32 vcc, 504, v0")
i("v_mov_b32 v35, 0x80000000")
i("s_nop 1")
i("v_cndmask_b32 v39, v35, v39, vcc")
i("s_mul_i32 s15, s8, %d" % (144*1152))
for st in range(21):
    i(f"buffer_load_dwordx4 v[{40+4*st}:{43+4*st}], v39, s[56:59], s15 offen{wS}")
    if st < 20:
        i("s_add_u32 s15, s15, 8064")
i("s_waitcnt lgkmcnt(0)")
i("s_barrier")
c("t<288: sum 28 partials; addr = (t>=144)*16704 + (t%144)*4")
i("v_cmp_le_u32 vcc, 144, v0")
i("v_lshlrev_b32 v14, 2, v0")
i("v_add_u32 v15, %d, v14" % (16704 - 576))
i("s_nop 0")
i("v_cndmask_b32 v14, v14, v15, vcc")
i("v_cmp_gt_u32 vcc, 288, v0")
i("s_nop 1")
i("s_and_saveexec_b64 s[72:73], vcc")
i("s_cbranch_execz L_ffn_a")
for r in range(28):
    i(f"ds_read_b32 v{130+r}, v14 offset:{L_GU + 576*r}")
i("s_waitcnt lgkmcnt(0)")
for r in range(1, 28):
    i(f"v_add_f32 v130, v130, v{130+r}")
round_bf16(130)
i("v_lshlrev_b32 v14, 2, v0")
i(f"ds_write_b32 v14, v130 offset:{L_GS}")
e("L_ffn_a:")
i("s_mov_b64 exec, s[72:73]")
i("s_waitcnt lgkmcnt(0)")
i("s_barrier")
c("t<152: hid")
i("v_cmp_gt_u32 vcc, 152, v0")
i("s_nop 1")
i("s_and_saveexec_b64 s[72:73], vcc")
i("s_cbranch_execz L_ffn_b")
i("v_lshlrev_b32 v14, 2, v0")
i(f"ds_read_b32 v15, v14 offset:{L_GS}")
i(f"ds_read_b32 v16, v14 offset:{L_GS+576}")
i("s_waitcnt lgkmcnt(0)")
c("gelu tanh: 0.5*g*(1+tanh(c0*(g+0.044715 g^3))) = g * (1 - 1/(exp(2u)+1))")
i("v_mul_f32 v17, v15, v15")
i("v_mul_f32 v17, 0x%08x, v17" % f2u(0.044715))
i("v_fma_f32 v17, v17, v15, v15")
i("v_mul_f32 v17, 0x%08x, v17" % f2u(2.0*0.7978845608028654*1.4426950408889634))
i("v_exp_f32 v17, v17")
i("s_nop 0")
i("v_add_f32 v17, 1.0, v17")
i("v_rcp_f32 v17, v17")
i("s_nop 0")
i("v_sub_f32 v17, 1.0, v17")
i("v_mul_f32 v17, v15, v17")
round_bf16(17)
i("v_mul_f32 v17, v17, v16")
round_bf16(17)
i("v_cmp_gt_u32 vcc, 144, v0")
i("s_nop 1")
i("v_cndmask_b32 v17, 0, v17, vcc")
i(f"ds_write_b32 v14, v17 offset:{L_HID}")
e("L_ffn_b:")
i("s_mov_b64 exec, s[72:73]")
i("s_waitcnt lgkmcnt(0)")
i("s_barrier")
i("s_lshl_b32 s9, s8, 3")
i("s_add_u32 s9, s9, 7")
i("s_mul_i32 s9, s9, 2304")
i("v_lshlrev_b32 v36, 2, v37")
i(f"v_add_u32 v36, {L_HID}, v36")
stamp(5)
proj_rows(21, 40, 36, L_YP2, 9)
e("L_done:")
stamp_flush()
e("L_exit:")
i("s_endpgm")

e(".globl fin_kernel")
e(".p2align 8")
e(".type fin_kernel,@function")
e("fin_kernel:")
i("s_cmp_ge_u32 s2, 36")
i("s_cbranch_scc1 L_fdone")
i("s_load_dwordx2 s[4:5], s[0:1], 0")
i("s_load_dwordx2 s[6:7], s[0:1], 72")
i("s_load_dwordx2 s[8:9], s[0:1], 88")
if STAMP:
    i("s_memrealtime s[32:33]")
i("s_mov_b32 s30, 0x%08x" % LOG2E)
i("v_mul_u32_u24 v1, 2304, v0")
i("v_lshlrev_b32 v2, 3, v0")
i("v_lshlrev_b32 v3, 1, v0")
i("s_lshl_b32 s3, s2, 6")
i("s_lshl_b32 s28, s2, 5")
i("s_waitcnt lgkmcnt(0)")
i("s_mov_b32 s12, s8")
i("s_and_b32 s13, s9, 0xffff")
i("s_mov_b32 s14, 0x100000")
i("s_mov_b32 s15, 0x00020000")
i("s_mov_b32 s16, s4")
i("s_and_b32 s17, s5, 0xffff")
i("s_movk_i32 s18, 1152")
i("s_mov_b32 s19, 0x00020000")
i("s_mov_b32 s20, s6")
i("s_and_b32 s21, s7, 0xffff")
i("s_movk_i32 s22, 1152")
i("s_mov_b32 s23, 0x00020000")
i("s_mov_b32 s24, %d" % WS_ML)
i("buffer_load_dwordx2 v[4:5], v2, s[12:15], s24 offen")
for d in range(4):
    i(f"buffer_load_dwordx4 v[{8+4*d}:{11+4*d}], v1, s[12:15], s3 offen offset:{16*d}")
i("buffer_load_ushort v6, v3, s[16:19], s28 offen")
i("v_and_b32 v7, 7, v0")
i("v_cmp_eq_u32 vcc, 7, v7")
i("v_mov_b32 v24, 0xff800000")
i("s_waitcnt vmcnt(5)")
i("v_cndmask_b32 v4, v4, v24, vcc")
i("v_cndmask_b32 v5, v5, 0, vcc") if False else None
i("v_mov_b32 v25, 0")
i("v_cndmask_b32 v5, v5, v25, vcc")
def red8(op, v):
    for mod in ("quad_perm:[1,0,3,2]", "quad_perm:[2,3,0,1]", "row_half_mirror"):
        i("s_nop 1")
        i(f"{op}_dpp v{v}, v{v}, v{v} {mod} row_mask:0xf bank_mask:0xf")
i("v_mov_b32 v26, v4")
red8("v_max_f32", 26)
i("v_sub_f32 v27, v4, v26")
i("v_mul_f32 v27, s30, v27")
i("v_exp_f32 v27, v27")
i("s_nop 0")
i("v_mul_f32 v28, v27, v5")
red8("v_add_f32", 28)
i("v_rcp_f32 v29, v28")
i("s_nop 0")
i("v_fma_f32 v30, -v28, v29, 1.0")
i("v_fma_f32 v29, v30, v29, v29")
i("v_mul_f32 v27, v27, v29")
i("v_mov_b32 v25, 1.0")
i("v_cndmask_b32 v27, v27, v25, vcc")
i("s_waitcnt vmcnt(1)")
for a in range(16):
    i(f"v_mul_f32 v{8+a}, v{8+a}, v27")
for a in range(16):
    i(f"v_add_f32_dpp v{8+a}, v{8+a}, v{8+a} row_ror:8 row_mask:0xf bank_mask:0xf")
i("s_nop 1")
for a in range(16):
    allreduce_rows("v_add_f32", 8+a, 31)
c("LDS [w][s][16]")
i("v_lshrrev_b32 v31, 6, v0")
i("v_lshlrev_b32 v31, 9, v31")
i("v_lshl_add_u32 v31, v7, 6, v31")
for d in range(4):
    i(f"ds_write_b128 v31, v[{8+4*d}:{11+4*d}] offset:{16*d}")
i("s_waitcnt lgkmcnt(0)")
i("s_barrier")
i("v_cmp_gt_u32 vcc, 16, v0")
i("s_nop 1")
i("s_and_saveexec_b64 s[26:27], vcc")
i("s_cbranch_execz L_fdone2")
i("v_lshlrev_b32 v31, 2, v0")
for w in range(4):
    for s in range(8):
        i(f"ds_read_b32 v{32+8*w+s}, v31 offset:{512*w+64*s}")
i("s_waitcnt lgkmcnt(0)")
first = True
for w in range(4):
    for s in range(7):
        if first:
            first = False
            continue
        i(f"v_add_f32 v32, v32, v{32+8*w+s}")
for w in range(1, 4):
    i(f"v_add_f32 v39, v39, v{39+8*w}")
round_bf16(32)
round_bf16(39)
i("s_waitcnt vmcnt(0)")
i("v_lshlrev_b32 v6, 16, v6")
i("v_add_f32 v6, v6, v32")
round_bf16(6)
i("v_add_f32 v6, v6, v39")
i("v_cvt_pk_bf16_f32 v6, v6, v6")
i("buffer_store_short v6, v3, s[20:23], s28 offen")
e("L_fdone2:")
if STAMP:
    i("s_mov_b64 exec, -1")
    i("s_memrealtime s[34:35]")
    i("s_waitcnt lgkmcnt(0)")
    i("s_lshl_b32 s36, s2, 4")
    i("s_add_u32 s36, s36, %d" % (0x100000 + 256*512))
    i("s_mov_b32 s14, 0x200000")
    i("v_mov_b32 v60, 0")
    i("v_mov_b32 v62, s32")
    i("v_mov_b32 v63, s34")
    i("buffer_store_dwordx2 v[62:63], v60, s[12:15], s36 offen")
e("L_fdone:")
i("s_endpgm")

e(""".section .rodata,"a"
.p2align 6
.amdhsa_kernel %s
  .amdhsa_next_free_vgpr 248
  .amdhsa_next_free_sgpr 100
  .amdhsa_accum_offset 248
  .amdhsa_group_segment_fixed_size 0
  .amdhsa_kernarg_size 96
  .amdhsa_user_sgpr_count 2
  .amdhsa_user_sgpr_kernarg_segment_ptr 1
  .amdhsa_system_sgpr_workgroup_id_x 1
.end_amdhsa_kernel
.p2align 6
.amdhsa_kernel fin_kernel
  .amdhsa_next_free_vgpr 64
  .amdhsa_next_free_sgpr 40
  .amdhsa_accum_offset 64
  .amdhsa_group_segment_fixed_size 0
  .amdhsa_kernarg_size 96
  .amdhsa_user_sgpr_count 2
  .amdhsa_user_sgpr_kernarg_segment_ptr 1
  .amdhsa_system_sgpr_workgroup_id_x 1
.end_amdhsa_kernel""" % KNAME)

path = sys.argv[1] if len(sys.argv) > 1 else "parallel_sum__mha_block_cached__geglu_ffn__decode.s"
open(path, "w").write("\n".join(out) + "\n")
print("wrote", path, len(out), "lines")
```

```python
import sys, os

MAP = int(os.environ.get("MAP","0"))
import os
NSLOT = int(os.environ.get('NSLOT', '1'))
NPRE = min(NSLOT, int(os.environ.get('NPRE', '1')))
WNT = int(os.environ.get('WNT', '0'))
NT = bool(int(os.environ.get("KVNT","1")))
out = []
wS = ' nt' if WNT else ''
def e(s=""):
    out.append(s)
def c(s):
    out.append("    ; " + s)
def i(s):
    out.append("    " + s)

VQ = []
def vq(tag, n=1):
    for _ in range(n): VQ.append(tag)
def vwait(tag):
    idxs = [k for k, t in enumerate(VQ) if t == tag]
    assert idxs, tag
    n = len(VQ) - 1 - idxs[-1]
    i(f"s_waitcnt vmcnt({n})")
    del VQ[:idxs[-1]+1]
    return n
STAMP = (len(sys.argv) > 2 and sys.argv[2] == "stamp")
DBGS = (len(sys.argv) > 2 and sys.argv[2] == "dbg")
STAMP = STAMP or DBGS
def stamp(idx):
    if not STAMP: return
    i(f"s_memrealtime s[{80+2*idx}:{81+2*idx}]")
def stamp_flush():
    if not STAMP: return
    i("s_mov_b64 exec, -1")
    stamp(7)
    i("s_waitcnt lgkmcnt(0)")
    if DBGS:
        i("s_mov_b32 s76, s36")
        i("s_and_b32 s77, s37, 0xffff")
        i("s_movk_i32 s78, 256")
        i("s_mov_b32 s79, 0x00020000")
        i("v_mov_b32 v246, 0")
        i("s_not_b32 s80, s80")
        for (slot, idx) in ((0, 0), (1, 7), (4, 2), (5, 4), (6, 1)):
            i(f"v_mov_b32 v247, s{80+2*idx}")
            i(f"buffer_atomic_umax v247, v246, s[76:79], 0 offen offset:{4*slot}")
        return
    i("s_lshl_b32 s78, s2, 9")
    i("s_lshl_b32 s79, s3, 6")
    i("s_add_u32 s78, s78, s79")
    i("s_add_u32 s78, s78, 0x100000")
    i("v_mov_b32 v246, 0")
    for idx in range(8):
        i(f"v_mov_b32 v247, s{80+2*idx}")
        i(f"buffer_store_dword v247, v246, s[64:67], s78 offen offset:{4*idx}")
KNAME = "parallel_sum__mha_block_cached__geglu_ffn__decode_kernel"

assert all((t*911)>>16 == t//72 for t in range(512))
assert all((t*3641)>>16 == t//18 for t in range(512))
assert all((W*128*9363)>>16 == (W*128)//7 for W in range(57))
assert all((w*9363)>>16 == w//7 for w in range(256))
assert all((j*37)>>8 == j//7 for j in range(28))

LOG2E = 0x3fb8aa3b
SCALE = 0x3db504f3
import struct
def f2u(x): return struct.unpack("<I", struct.pack("<f", x))[0]
assert f2u(0.08838834764831845) == SCALE
assert f2u(1.4426950408889634) == LOG2E

L_XN = 0
L_QP = 2560
L_QB = 6656
L_OP = 8704
L_ML = 12800
L_OF = 12928
L_YP = 17408
L_GU = 2560
L_GS = 36096
L_HID = 37248
L_YP2 = 2560
LDS_BYTES = 38912

WS_ML = 0x90000

hdr = """; Kernarg layout for this problem (96 bytes, ptrs only, base s[0:1]):
;   offset   0: d_in[0] A_x  shape=(1, 1, 576) dtype=bfloat16
;   offset   8: d_in[1] A_k_cache  shape=(1, 32, 16384, 128) dtype=bfloat16
;   offset  16: d_in[2] A_v_cache  shape=(1, 32, 16384, 128) dtype=bfloat16
;   offset  24: d_in[3] A_wq  shape=(576, 4096) dtype=bfloat16
;   offset  32: d_in[4] A_wo  shape=(4096, 576) dtype=bfloat16
;   offset  40: d_in[5] B_x  shape=(1, 1, 576) dtype=bfloat16
;   offset  48: d_in[6] B_w_gate  shape=(576, 4608) dtype=bfloat16
;   offset  56: d_in[7] B_w_up  shape=(576, 4608) dtype=bfloat16
;   offset  64: d_in[8] B_w_down  shape=(4608, 576) dtype=bfloat16
;   offset  72: d_out     shape=(1, 1, 576) dtype=bfloat16 (2 bytes/elem)
;   offset  80: d_debug   256 bytes
;   offset  88: d_ws      536870912 bytes workspace
; @launch kernel=%s grid=(256,1,1) block=(512,1,1) lds=%d
; @launch kernel=fin_kernel grid=(36,1,1) block=(256,1,1) lds=2048
.amdgcn_target "amdgcn-amd-amdhsa--gfx950"
.text
""" % (KNAME, LDS_BYTES)
e(hdr.rstrip("\n"))

def allreduce_rows(op, v, tmp):
    i(f"v_mov_b32 v{tmp}, v{v}")
    i("s_nop 1")
    i(f"v_permlane16_swap_b32 v{v}, v{tmp}")
    i("s_nop 1")
    i(f"{op} v{v}, v{v}, v{tmp}")
    i(f"v_mov_b32 v{tmp}, v{v}")
    i("s_nop 1")
    i(f"v_permlane32_swap_b32 v{v}, v{tmp}")
    i("s_nop 1")
    i(f"{op} v{v}, v{v}, v{tmp}")

def allreduce_row16(op, v):
    for r in (8, 4, 2, 1):
        i("s_nop 1")
        i(f"{op}_dpp v{v}, v{v}, v{v} row_ror:{r} row_mask:0xf bank_mask:0xf")

def round_bf16(v, tmp=None):
    i(f"v_cvt_pk_bf16_f32 v{v}, v{v}, v{v}")
    i(f"v_and_b32 v{v}, 0xffff0000, v{v}")

e(f".globl {KNAME}")
e(".p2align 8")
e(f".type {KNAME},@function")
e(f"{KNAME}:")
i("s_cmp_ge_u32 s2, 256")
i("s_cbranch_scc1 L_exit")
stamp(0)
i("s_load_dwordx16 s[16:31], s[0:1], 0")
i("s_load_dwordx8 s[32:39], s[0:1], 64")
i("v_lshrrev_b32 v1, 6, v0")
i("v_and_b32 v2, 63, v0")
i("s_nop 0")
i("v_readfirstlane_b32 s3, v1")
i("s_and_b32 s4, s2, 7")
i("s_lshr_b32 s5, s2, 3")
i("s_mov_b32 s70, 0x%08x" % LOG2E)
i("s_mov_b32 s71, 0x%08x" % SCALE)
i("s_waitcnt lgkmcnt(0)")
c("SRD x: s[40:43]")
i("s_mov_b32 s40, s16")
i("s_and_b32 s41, s17, 0xffff")
i("s_movk_i32 s42, 1152")
i("s_mov_b32 s43, 0x00020000")
c("SRD ws: s[64:67]")
i("s_mov_b32 s64, s38")
i("s_and_b32 s65, s39, 0xffff")
i("s_mov_b32 s66, 0x200000")
i("s_mov_b32 s67, 0x00020000")
c("x loads")
i("v_lshlrev_b32 v1, 4, v2")
i("v_lshlrev_b32 v3, 1, v2")
i("buffer_load_dwordx4 v[16:19], v1, s[40:43], 0 offen")
i("buffer_load_ushort v20, v3, s[40:43], 0 offen offset:1024")
i("s_cmp_ge_u32 s5, 28")
i("s_cbranch_scc1 L_ffn")

def layernorm(nwait):
    i(f"s_waitcnt vmcnt({nwait})")
    for d in range(4):
        i(f"v_lshlrev_b32 v{22+2*d}, 16, v{16+d}")
        i(f"v_and_b32 v{23+2*d}, 0xffff0000, v{16+d}")
    i("v_lshlrev_b32 v30, 16, v20")
    i("v_add_f32 v31, v22, v23")
    for k in range(24, 31):
        i(f"v_add_f32 v31, v31, v{k}")
    allreduce_row16("v_add_f32", 31)
    i("s_nop 1")
    allreduce_rows("v_add_f32", 31, 32)
    i("v_mul_f32 v31, 0x%08x, v31" % f2u(1.0/576.0))
    i("v_sub_f32 v33, v22, v31")
    i("v_mul_f32 v32, v33, v33")
    for k in range(23, 31):
        i(f"v_sub_f32 v33, v{k}, v31")
        i("v_fmac_f32 v32, v33, v33")
    allreduce_row16("v_add_f32", 32)
    i("s_nop 1")
    allreduce_rows("v_add_f32", 32, 33)
    i("v_mul_f32 v32, 0x%08x, v32" % f2u(1.0/576.0))
    round_bf16(32)
    i("v_add_f32 v32, 0x%08x, v32" % f2u(1e-5))
    round_bf16(32)
    i("v_sqrt_f32 v32, v32")
    i("s_nop 0")
    round_bf16(32)
    i("v_rcp_f32 v33, v32")
    round_bf16(31)
    for k in range(22, 31):
        i(f"v_sub_f32 v{k}, v{k}, v31")
        round_bf16(k)
        i(f"v_mul_f32 v34, v{k}, v33")
        i(f"v_fma_f32 v35, -v34, v32, v{k}")
        i(f"v_fma_f32 v{k}, v35, v33, v34")
        round_bf16(k)
    i("v_lshlrev_b32 v34, 5, v2")
    i(f"ds_write_b128 v34, v[22:25] offset:{L_XN}")
    i(f"ds_write_b128 v34, v[26:29] offset:{L_XN+16}")
    i("v_lshlrev_b32 v34, 2, v2")
    i(f"ds_write_b32 v34, v30 offset:{L_XN+2048}")
    i("v_and_b32 v34, 60, v34")
    i("v_mov_b32 v35, 0")
    i(f"ds_write_b32 v34, v35 offset:{L_XN+2304}")

def proj_rows(nsteps, stg, l_src_addr_v, l_yp, final_row_s):
    for st in range(nsteps):
        i(f"ds_read_b32 v{14+st}, v{l_src_addr_v} offset:{28*st}")
    for a in range(8):
        i(f"v_mov_b32 v{6+a}, 0")
    i("s_waitcnt vmcnt(0) lgkmcnt(0)")
    for st in range(nsteps):
        for d in range(4):
            r = stg + 4*st + d
            i(f"v_lshlrev_b32 v{36+3}, 16, v{r}")
            i(f"v_and_b32 v{r}, 0xffff0000, v{r}")
            i(f"v_fmac_f32 v{6+2*d}, v{14+st}, v39")
            i(f"v_fmac_f32 v{7+2*d}, v{14+st}, v{r}")
    i("v_mul_u32_u24 v39, 2304, v37")
    i("v_lshl_add_u32 v39, v38, 5, v39")
    i(f"ds_write_b128 v39, v[6:9] offset:{l_yp}")
    i(f"ds_write_b128 v39, v[10:13] offset:{l_yp+16}")
    i("s_waitcnt lgkmcnt(0)")
    i("s_barrier")
    i("v_cmp_gt_u32 vcc, 144, v0")
    i("s_nop 1")
    i("s_and_saveexec_b64 s[72:73], vcc")
    i("s_cbranch_execz L_done")
    i("v_lshlrev_b32 v39, 4, v0")
    for r in range(7):
        i(f"ds_read_b128 v[{40+4*r}:{43+4*r}], v39 offset:{l_yp + 2304*r}")
    i("s_waitcnt lgkmcnt(0)")
    for r in range(1, 7):
        for d in range(4):
            i(f"v_add_f32 v{40+d}, v{40+d}, v{40+4*r+d}")
    i(f"buffer_store_dwordx4 v[40:43], v39, s[64:67], s{final_row_s} offen")

def thread_div72():
    i("v_mul_u32_u24 v37, 911, v0")
    i("v_lshrrev_b32 v37, 16, v37")
    i("v_mul_u32_u24 v38, 72, v37")
    i("v_sub_u32 v38, v0, v38")

c("================= attention role =================")
if MAP == 0:
    i("s_mul_i32 s6, s5, 37")
    i("s_lshr_b32 s6, s6, 8")
    i("s_mul_i32 s7, s6, 7")
    i("s_sub_u32 s7, s5, s7")
    i("s_lshl_b32 s8, s4, 2")
    i("s_add_u32 s8, s8, s6")
else:
    i("s_mul_i32 s8, s2, 9363")
    i("s_lshr_b32 s8, s8, 16")
    i("s_mul_i32 s7, s8, 7")
    i("s_sub_u32 s7, s2, s7")
c("SRD wq: s[52:55]")
i("s_mov_b32 s52, s22")
i("s_and_b32 s53, s23, 0xffff")
i("s_mov_b32 s54, %d" % (0 if os.environ.get("NOQ") else 576*4096*2))
i("s_mov_b32 s55, 0x00020000")
c("SRD wo: s[56:59], num_records = (h+1)*128*1152")
i("s_mov_b32 s56, s24")
i("s_and_b32 s57, s25, 0xffff")
i("s_add_u32 s58, s8, 1")
i("s_mul_i32 s58, s58, %d" % (0 if os.environ.get("NOWO") else 128*1152))
i("s_mov_b32 s59, 0x00020000")
c("WG-blocks of 128 keys: WG s takes blocks s, s+7, ...; wave w takes 16 keys of each")
i("s_cmp_lt_u32 s7, 2")
i("s_cselect_b32 s12, 19, 18")
i("s_lshl_b32 s13, s7, 15")
i("s_lshl_b32 s9, s3, 12")
i("s_add_u32 s13, s13, s9")
i("s_movk_i32 s11, 1024")
c("SRD K: s[44:47], V: s[48:51]; base += h*4MiB ; num_records = end*4096")
i("s_lshl_b32 s14, s8, 22")
i("s_add_u32 s44, s18, s14")
i("s_addc_u32 s45, s19, 0")
i("s_and_b32 s45, s45, 0xffff")
i("s_lshl_b32 s46, s11, 12")
i("s_mov_b32 s47, 0x00020000")
i("s_add_u32 s48, s20, s14")
i("s_addc_u32 s49, s21, 0")
i("s_and_b32 s49, s49, 0xffff")
i("s_mov_b32 s50, s46")
i("s_mov_b32 s51, 0x00020000")
c("wq loads: voffset = (t>>4)*8192 + h*256 + (t&15)*16 ; soffset = st*262144")
i("v_lshrrev_b32 v36, 4, v0")
i("v_lshlrev_b32 v37, 13, v36")
i("v_and_b32 v38, 15, v0")
i("v_lshl_add_u32 v37, v38, 4, v37")
i("s_lshl_b32 s15, s8, 8")
for st in range(18):
    i(f"buffer_load_dwordx4 v[{40+4*st}:{43+4*st}], v37, s[52:55], s15 offen{wS}")
    if st < 17:
        i("s_add_u32 s15, s15, 262144")
RB = 116
ntK = " nt" if int(os.environ.get("KNT", "1")) else ""
ntV = " nt" if int(os.environ.get("VNT", "1")) else ""
if os.environ.get("KVPOL") is not None:
    ntK = ntV = " " + os.environ["KVPOL"]
VQ.clear(); vq("x", 2)
for st in range(18): vq(f"wq{st}")
def ld_k(slot, tag=None):
    for t in range(4):
        i(f"buffer_load_dwordx4 v[{RB+32*slot+4*t}:{RB+32*slot+4*t+3}], v1, s[44:47], s13 offen offset:{1024*t}{ntK}")
    vq(tag or "K", 4)
def ld_v(slot, tag=None):
    for t in range(4):
        i(f"buffer_load_dwordx4 v[{RB+32*slot+16+4*t}:{RB+32*slot+16+4*t+3}], v1, s[48:51], s13 offen offset:{1024*t}{ntV}")
    vq(tag or "V", 4)
def kv_prefetch(slots):
    for slot in slots:
        ld_k(slot, f"K{slot}"); ld_v(slot, f"V{slot}")
        i("s_add_u32 s13, s13, 229376")
if int(os.environ.get('QBAR','0')):
    i('s_barrier')
kv_prefetch(range(NPRE))
layernorm(len(VQ) - 2); del VQ[:2]
c("xn values for this thread: xn[32*st + r], r = t>>4 (v36)")
i("v_lshlrev_b32 v36, 2, v36")
for st in range(18):
    i(f"ds_read_b32 v{14+st}, v36 offset:{L_XN + 128*st}")
for a in range(8):
    i(f"v_mov_b32 v{6+a}, 0")
i("s_waitcnt lgkmcnt(0)")
for st in range(18):
    vwait(f"wq{st}")
    for d in range(4):
        r = 40 + 4*st + d
        i(f"v_lshlrev_b32 v{32+(d&1)}, 16, v{r}")
        i(f"v_and_b32 v{r}, 0xffff0000, v{r}")
        i(f"v_fmac_f32 v{6+2*d}, v{14+st}, v{32+(d&1)}")
        i(f"v_fmac_f32 v{7+2*d}, v{14+st}, v{r}")
stamp(1)
c("reduce q partials across the 4 lane groups, then across waves through LDS")
for a in range(8):
    allreduce_rows("v_add_f32", 6+a, 32)
i("v_and_b32 v32, 15, v0")
i("v_lshlrev_b32 v32, 5, v32")
i("s_lshl_b32 s15, s3, 9")
i("v_add_u32 v32, s15, v32")
i(f"ds_write_b128 v32, v[6:9] offset:{L_QP}")
i(f"ds_write_b128 v32, v[10:13] offset:{L_QP+16}")
i("s_waitcnt lgkmcnt(0)")
i("s_barrier")
i("v_lshlrev_b32 v32, 3, v2")
for w in range(8):
    i(f"ds_read_b64 v[{14+2*w}:{15+2*w}], v32 offset:{L_QP + 512*w}")
kv_prefetch(range(NPRE, NSLOT))
i("s_waitcnt lgkmcnt(0)")
for w in range(1, 8):
    i(f"v_add_f32 v14, v14, v{14+2*w}")
    i(f"v_add_f32 v15, v15, v{15+2*w}")
i("v_cvt_pk_bf16_f32 v14, v14, v15")
i("s_lshl_b32 s15, s3, 8")
i("v_lshlrev_b32 v32, 2, v2")
i("v_add_u32 v32, s15, v32")
i(f"ds_write_b32 v32, v14 offset:{L_QB}")
i("v_and_b32 v32, 15, v0")
i("v_lshlrev_b32 v32, 4, v32")
i("v_add_u32 v32, s15, v32")
i("s_waitcnt lgkmcnt(0)")
i(f"ds_read_b128 v[2:5], v32 offset:{L_QB}")
for a in range(8):
    i(f"v_mov_b32 v{6+a}, 0")
i("v_mov_b32 v14, 0xff800000")
i("v_mov_b32 v15, 0")
i("s_mov_b32 s74, 0x%08x" % (f2u(-1.4426950408889634)))
i("s_waitcnt lgkmcnt(0)")

def iv(x):
    if not os.environ.get("NOCOMP"): i(x)
def block(slot, steady=False):
    K = RB + 32*slot
    V = K + 16
    n = vwait(f"K{slot}")
    if steady: assert n == 8*NSLOT-4, n
    for d in range(4):
        for t in range(4):
            src2 = "0" if d == 0 else f"v{16+t}"
            iv(f"v_dot2_f32_bf16 v{16+t}, v{K+4*t+d}, v{2+d}, {src2}")
    ld_k(slot, f"K{slot}")
    for r in (8, 4, 2, 1):
        for t in range(4):
            iv(f"v_add_f32_dpp v{16+t}, v{16+t}, v{16+t} row_ror:{r} row_mask:0xf bank_mask:0xf")
    def rnd():
        iv("v_cvt_pk_bf16_f32 v24, v16, v17")
        iv("v_cvt_pk_bf16_f32 v25, v18, v19")
        iv("v_lshlrev_b32 v16, 16, v24")
        iv("v_and_b32 v17, 0xffff0000, v24")
        iv("v_lshlrev_b32 v18, 16, v25")
        iv("v_and_b32 v19, 0xffff0000, v25")
    rnd()
    for t in range(4):
        iv(f"v_mul_f32 v{16+t}, s71, v{16+t}")
    rnd()
    iv("v_max3_f32 v24, v16, v17, v18")
    iv("v_max3_f32 v24, v24, v19, v14")
    iv("v_mul_f32 v33, s74, v24")
    iv("v_fma_f32 v32, v14, s70, v33")
    for t in range(4):
        iv(f"v_fma_f32 v{20+t}, v{16+t}, s70, v33")
    iv("v_exp_f32 v32, v32")
    for t in range(4):
        iv(f"v_exp_f32 v{20+t}, v{20+t}")
    iv("v_mov_b32 v14, v24")
    iv("v_fma_f32 v15, v15, v32, v20")
    iv("v_add_f32 v24, v21, v22")
    iv("v_add_f32 v15, v15, v23")
    iv("v_add_f32 v15, v15, v24")
    for a in range(8):
        iv(f"v_mul_f32 v{6+a}, v{6+a}, v32")
    n = vwait(f"V{slot}")
    if steady: assert n == 8*NSLOT-4, n
    for t in range(4):
        for d in range(4):
            u = 24 + 2*(d & 1)
            iv(f"v_lshlrev_b32 v{u}, 16, v{V+4*t+d}")
            iv(f"v_and_b32 v{u+1}, 0xffff0000, v{V+4*t+d}")
            iv(f"v_fmac_f32 v{6+2*d}, v{20+t}, v{u}")
            iv(f"v_fmac_f32 v{7+2*d}, v{20+t}, v{u+1}")
    ld_v(slot, f"V{slot}")
    i("s_add_u32 s13, s13, 229376")

stamp(2)
c("round 1")
for slot in range(NSLOT):
    block(slot)
c("wo loads into staging (issued now, consumed at the end)")
thread_div72()
i("v_lshlrev_b32 v39, 4, v0")
i("v_cmp_gt_u32 vcc, 504, v0")
i("v_mov_b32 v35, 0x80000000")
i("s_nop 1")
i("v_cndmask_b32 v39, v35, v39, vcc")
i("s_mul_i32 s15, s8, %d" % (128*1152))
for st in range(19):
    i(f"buffer_load_dwordx4 v[{40+4*st}:{43+4*st}], v39, s[56:59], s15 offen{wS}")
    if st < 18:
        i("s_add_u32 s15, s15, 8064")
vq("wo", 19)
c("round 2")
for slot in range(NSLOT):
    block(slot)
i(f"s_sub_u32 s12, s12, {2*NSLOT}")
stamp(3)
e("L_loop:")
for slot in range(NSLOT):
    block(slot, True)
    i("s_sub_u32 s12, s12, 1")
    i("s_cmp_eq_u32 s12, 0")
    if slot < NSLOT-1:
        i("s_cbranch_scc1 L_loop_done")
    else:
        i("s_cbranch_scc0 L_loop")
e("L_loop_done:")
stamp(4)
i("s_waitcnt vmcnt(0)")
c("merge the 4 lane groups of this wave")
i("v_mov_b32 v16, v14")
allreduce_rows("v_max_f32", 16, 32)
i("v_sub_f32 v17, v14, v16")
i("v_mul_f32 v17, s70, v17")
i("v_exp_f32 v17, v17")
i("s_nop 0")
i("v_mul_f32 v15, v15, v17")
for a in range(8):
    i(f"v_mul_f32 v{6+a}, v{6+a}, v17")
allreduce_rows("v_add_f32", 15, 32)
for a in range(8):
    allreduce_rows("v_add_f32", 6+a, 32)
i("v_and_b32 v32, 15, v0")
i("v_lshlrev_b32 v32, 5, v32")
i("s_lshl_b32 s15, s3, 9")
i("v_add_u32 v32, s15, v32")
i(f"ds_write_b128 v32, v[6:9] offset:{L_OP}")
i(f"ds_write_b128 v32, v[10:13] offset:{L_OP+16}")
i("s_lshl_b32 s15, s3, 3")
i("v_mov_b32 v32, s15")
i("v_mov_b32 v17, v15")
i(f"ds_write_b64 v32, v[16:17] offset:{L_ML}")
i("s_waitcnt lgkmcnt(0)")
i("s_barrier")
c("every wave: combine 8 waves -> o~[128] into its own LDS area")
i("v_mov_b32 v32, 0")
for w in range(8):
    i(f"ds_read_b64 v[{16+2*w}:{17+2*w}], v32 offset:{L_ML+8*w}")
i("v_and_b32 v2, 63, v0")
i("v_lshlrev_b32 v33, 3, v2")
for w in range(8):
    i(f"ds_read_b64 v[{116+2*w}:{117+2*w}], v33 offset:{L_OP+512*w}")
i("s_waitcnt lgkmcnt(0)")
i("v_max3_f32 v14, v16, v18, v20")
i("v_max3_f32 v14, v14, v22, v24")
i("v_max3_f32 v14, v14, v26, v28")
i("v_max_f32 v14, v14, v30")
for w in range(8):
    i(f"v_sub_f32 v{16+2*w}, v{16+2*w}, v14")
    i(f"v_mul_f32 v{16+2*w}, s70, v{16+2*w}")
    i(f"v_exp_f32 v{16+2*w}, v{16+2*w}")
i("v_mov_b32 v15, 0")
i("v_mov_b32 v6, 0")
i("v_mov_b32 v7, 0")
for w in range(8):
    i(f"v_fmac_f32 v15, v{16+2*w}, v{17+2*w}")
    i(f"v_fmac_f32 v6, v{16+2*w}, v{116+2*w}")
    i(f"v_fmac_f32 v7, v{16+2*w}, v{117+2*w}")
i("s_mul_i32 s15, s3, 544")
i("v_add_u32 v33, s15, v33")
i(f"ds_write_b64 v33, v[6:7] offset:{L_OF}")
i("v_and_b32 v33, 7, v2")
i("v_lshlrev_b32 v33, 2, v33")
i("v_add_u32 v33, s15, v33")
i("v_mov_b32 v8, 0")
i(f"ds_write_b32 v33, v8 offset:{L_OF+512}")
c("store (M,L): row = h*8+s")
i("s_lshl_b32 s9, s8, 3")
i("s_add_u32 s9, s9, s7")
i("s_lshl_b32 s10, s9, 3")
i("s_add_u32 s10, s10, %d" % WS_ML)
i("v_cmp_eq_u32 vcc, 0, v0")
i("s_nop 1")
i("s_and_saveexec_b64 s[72:73], vcc")
i("s_cbranch_execz L_skip_ml")
i("v_mov_b32 v33, 0")
i("buffer_store_dwordx2 v[14:15], v33, s[64:67], s10 offen")
e("L_skip_ml:")
i("s_mov_b64 exec, s[72:73]")
i("s_mul_i32 s9, s9, 2304")
i("v_lshlrev_b32 v36, 2, v37")
i("v_add_u32 v36, s15, v36")
i(f"v_add_u32 v36, {L_OF}, v36")
i("s_waitcnt lgkmcnt(0)")
stamp(5)
proj_rows(19, 40, 36, L_YP, 9)
i("s_branch L_done")

e("L_ffn:")
if os.environ.get("NOFFN"):
    i("s_branch L_exit")
c("================= FFN role: f = xcd*4 + (j-28), 144 columns =================")
i("s_lshl_b32 s8, s4, 2")
i("s_add_u32 s8, s8, s5")
i("s_sub_u32 s8, s8, 28")
c("SRD gate s[52:55], up s[60:63], down s[56:59]")
i("s_mov_b32 s52, s28")
i("s_and_b32 s53, s29, 0xffff")
i("s_mov_b32 s54, %d" % (576*4608*2))
i("s_mov_b32 s55, 0x00020000")
i("s_mov_b32 s60, s30")
i("s_and_b32 s61, s31, 0xffff")
i("s_mov_b32 s62, %d" % (576*4608*2))
i("s_mov_b32 s63, 0x00020000")
i("s_mov_b32 s56, s32")
i("s_and_b32 s57, s33, 0xffff")
i("s_add_u32 s58, s8, 1")
i("s_mul_i32 s58, s58, %d" % (144*1152))
i("s_mov_b32 s59, 0x00020000")
c("t<504: r = t/18 (v36), c = t%18 (v37); voffset = r*9216 + c*16 ; soffset = f*288 + st*258048")
i("v_mul_u32_u24 v36, 3641, v0")
i("v_lshrrev_b32 v36, 16, v36")
i("v_mul_u32_u24 v37, 18, v36")
i("v_sub_u32 v37, v0, v37")
i("v_mul_u32_u24 v38, 9216, v36")
i("v_lshl_add_u32 v38, v37, 4, v38")
i("v_cmp_gt_u32 vcc, 504, v0")
i("v_mov_b32 v35, 0x80000000")
i("s_nop 1")
i("v_cndmask_b32 v38, v35, v38, vcc")
i("s_mul_i32 s15, s8, 288")
GST, UST = 40, 124
for st in range(21):
    i(f"buffer_load_dwordx4 v[{GST+4*st}:{GST+4*st+3}], v38, s[52:55], s15 offen{wS}")
    i(f"buffer_load_dwordx4 v[{UST+4*st}:{UST+4*st+3}], v38, s[60:63], s15 offen{wS}")
    if st < 20:
        i("s_add_u32 s15, s15, 258048")
layernorm(42)
i("v_lshlrev_b32 v39, 2, v36")
for st in range(21):
    i(f"ds_read_b32 v{14+st}, v39 offset:{L_XN + 112*st}")
for a in range(8):
    i(f"v_mov_b32 v{6+a}, 0")
    i(f"v_mov_b32 v{208+a}, 0")
i("s_waitcnt lgkmcnt(0)")
for st in range(21):
    i(f"s_waitcnt vmcnt({2*(20-st)})")
    for (base, acc) in ((GST, 6), (UST, 208)):
        for d in range(4):
            r = base + 4*st + d
            i(f"v_lshlrev_b32 v35, 16, v{r}")
            i(f"v_and_b32 v{r}, 0xffff0000, v{r}")
            i(f"v_fmac_f32 v{acc+2*d}, v{14+st}, v35")
            i(f"v_fmac_f32 v{acc+1+2*d}, v{14+st}, v{r}")
stamp(1)
c("GU partials to LDS")
i("v_mul_u32_u24 v39, 576, v36")
i("v_lshl_add_u32 v39, v37, 5, v39")
i(f"ds_write_b128 v39, v[6:9] offset:{L_GU}")
i(f"ds_write_b128 v39, v[10:13] offset:{L_GU+16}")
i(f"ds_write_b128 v39, v[208:211] offset:{L_GU+16704}")
i(f"ds_write_b128 v39, v[212:215] offset:{L_GU+16704+16}")
c("down loads")
thread_div72()
i("v_lshlrev_b32 v39, 4, v0")
i("v_cmp_gt_u32 vcc, 504, v0")
i("v_mov_b32 v35, 0x80000000")
i("s_nop 1")
i("v_cndmask_b32 v39, v35, v39, vcc")
i("s_mul_i32 s15, s8, %d" % (144*1152))
for st in range(21):
    i(f"buffer_load_dwordx4 v[{40+4*st}:{43+4*st}], v39, s[56:59], s15 offen{wS}")
    if st < 20:
        i("s_add_u32 s15, s15, 8064")
i("s_waitcnt lgkmcnt(0)")
i("s_barrier")
c("t<288: sum 28 partials; addr = (t>=144)*16704 + (t%144)*4")
i("v_cmp_le_u32 vcc, 144, v0")
i("v_lshlrev_b32 v14, 2, v0")
i("v_add_u32 v15, %d, v14" % (16704 - 576))
i("s_nop 0")
i("v_cndmask_b32 v14, v14, v15, vcc")
i("v_cmp_gt_u32 vcc, 288, v0")
i("s_nop 1")
i("s_and_saveexec_b64 s[72:73], vcc")
i("s_cbranch_execz L_ffn_a")
for r in range(28):
    i(f"ds_read_b32 v{130+r}, v14 offset:{L_GU + 576*r}")
i("s_waitcnt lgkmcnt(0)")
for r in range(1, 28):
    i(f"v_add_f32 v130, v130, v{130+r}")
round_bf16(130)
i("v_lshlrev_b32 v14, 2, v0")
i(f"ds_write_b32 v14, v130 offset:{L_GS}")
e("L_ffn_a:")
i("s_mov_b64 exec, s[72:73]")
i("s_waitcnt lgkmcnt(0)")
i("s_barrier")
c("t<152: hid")
i("v_cmp_gt_u32 vcc, 152, v0")
i("s_nop 1")
i("s_and_saveexec_b64 s[72:73], vcc")
i("s_cbranch_execz L_ffn_b")
i("v_lshlrev_b32 v14, 2, v0")
i(f"ds_read_b32 v15, v14 offset:{L_GS}")
i(f"ds_read_b32 v16, v14 offset:{L_GS+576}")
i("s_waitcnt lgkmcnt(0)")
c("gelu tanh: 0.5*g*(1+tanh(c0*(g+0.044715 g^3))) = g * (1 - 1/(exp(2u)+1))")
i("v_mul_f32 v17, v15, v15")
i("v_mul_f32 v17, 0x%08x, v17" % f2u(0.044715))
i("v_fma_f32 v17, v17, v15, v15")
i("v_mul_f32 v17, 0x%08x, v17" % f2u(2.0*0.7978845608028654*1.4426950408889634))
i("v_exp_f32 v17, v17")
i("s_nop 0")
i("v_add_f32 v17, 1.0, v17")
i("v_rcp_f32 v17, v17")
i("s_nop 0")
i("v_sub_f32 v17, 1.0, v17")
i("v_mul_f32 v17, v15, v17")
round_bf16(17)
i("v_mul_f32 v17, v17, v16")
round_bf16(17)
i("v_cmp_gt_u32 vcc, 144, v0")
i("s_nop 1")
i("v_cndmask_b32 v17, 0, v17, vcc")
i(f"ds_write_b32 v14, v17 offset:{L_HID}")
e("L_ffn_b:")
i("s_mov_b64 exec, s[72:73]")
i("s_waitcnt lgkmcnt(0)")
i("s_barrier")
i("s_lshl_b32 s9, s8, 3")
i("s_add_u32 s9, s9, 7")
i("s_mul_i32 s9, s9, 2304")
i("v_lshlrev_b32 v36, 2, v37")
i(f"v_add_u32 v36, {L_HID}, v36")
stamp(5)
proj_rows(21, 40, 36, L_YP2, 9)
e("L_done:")
stamp_flush()
e("L_exit:")
i("s_endpgm")

e(".globl fin_kernel")
e(".p2align 8")
e(".type fin_kernel,@function")
e("fin_kernel:")
i("s_cmp_ge_u32 s2, 36")
i("s_cbranch_scc1 L_fdone")
i("s_load_dwordx2 s[4:5], s[0:1], 0")
i("s_load_dwordx2 s[6:7], s[0:1], 72")
i("s_load_dwordx2 s[8:9], s[0:1], 88")
if STAMP:
    i("s_memrealtime s[32:33]")
i("s_mov_b32 s30, 0x%08x" % LOG2E)
i("v_mul_u32_u24 v1, 2304, v0")
i("v_lshlrev_b32 v2, 3, v0")
i("v_lshlrev_b32 v3, 1, v0")
i("s_lshl_b32 s3, s2, 6")
i("s_lshl_b32 s28, s2, 5")
i("s_waitcnt lgkmcnt(0)")
i("s_mov_b32 s12, s8")
i("s_and_b32 s13, s9, 0xffff")
i("s_mov_b32 s14, 0x100000")
i("s_mov_b32 s15, 0x00020000")
i("s_mov_b32 s16, s4")
i("s_and_b32 s17, s5, 0xffff")
i("s_movk_i32 s18, 1152")
i("s_mov_b32 s19, 0x00020000")
i("s_mov_b32 s20, s6")
i("s_and_b32 s21, s7, 0xffff")
i("s_movk_i32 s22, 1152")
i("s_mov_b32 s23, 0x00020000")
i("s_mov_b32 s24, %d" % WS_ML)
i("buffer_load_dwordx2 v[4:5], v2, s[12:15], s24 offen")
for d in range(4):
    i(f"buffer_load_dwordx4 v[{8+4*d}:{11+4*d}], v1, s[12:15], s3 offen offset:{16*d}")
i("buffer_load_ushort v6, v3, s[16:19], s28 offen")
i("v_and_b32 v7, 7, v0")
i("v_cmp_eq_u32 vcc, 7, v7")
i("v_mov_b32 v24, 0xff800000")
i("s_waitcnt vmcnt(5)")
i("v_cndmask_b32 v4, v4, v24, vcc")
i("v_cndmask_b32 v5, v5, 0, vcc") if False else None
i("v_mov_b32 v25, 0")
i("v_cndmask_b32 v5, v5, v25, vcc")
def red8(op, v):
    for mod in ("quad_perm:[1,0,3,2]", "quad_perm:[2,3,0,1]", "row_half_mirror"):
        i("s_nop 1")
        i(f"{op}_dpp v{v}, v{v}, v{v} {mod} row_mask:0xf bank_mask:0xf")
i("v_mov_b32 v26, v4")
red8("v_max_f32", 26)
i("v_sub_f32 v27, v4, v26")
i("v_mul_f32 v27, s30, v27")
i("v_exp_f32 v27, v27")
i("s_nop 0")
i("v_mul_f32 v28, v27, v5")
red8("v_add_f32", 28)
i("v_rcp_f32 v29, v28")
i("s_nop 0")
i("v_fma_f32 v30, -v28, v29, 1.0")
i("v_fma_f32 v29, v30, v29, v29")
i("v_mul_f32 v27, v27, v29")
i("v_mov_b32 v25, 1.0")
i("v_cndmask_b32 v27, v27, v25, vcc")
i("s_waitcnt vmcnt(1)")
for a in range(16):
    i(f"v_mul_f32 v{8+a}, v{8+a}, v27")
for a in range(16):
    i(f"v_add_f32_dpp v{8+a}, v{8+a}, v{8+a} row_ror:8 row_mask:0xf bank_mask:0xf")
i("s_nop 1")
for a in range(16):
    allreduce_rows("v_add_f32", 8+a, 31)
c("LDS [w][s][16]")
i("v_lshrrev_b32 v31, 6, v0")
i("v_lshlrev_b32 v31, 9, v31")
i("v_lshl_add_u32 v31, v7, 6, v31")
for d in range(4):
    i(f"ds_write_b128 v31, v[{8+4*d}:{11+4*d}] offset:{16*d}")
i("s_waitcnt lgkmcnt(0)")
i("s_barrier")
i("v_cmp_gt_u32 vcc, 16, v0")
i("s_nop 1")
i("s_and_saveexec_b64 s[26:27], vcc")
i("s_cbranch_execz L_fdone2")
i("v_lshlrev_b32 v31, 2, v0")
for w in range(4):
    for s in range(8):
        i(f"ds_read_b32 v{32+8*w+s}, v31 offset:{512*w+64*s}")
i("s_waitcnt lgkmcnt(0)")
first = True
for w in range(4):
    for s in range(7):
        if first:
            first = False
            continue
        i(f"v_add_f32 v32, v32, v{32+8*w+s}")
for w in range(1, 4):
    i(f"v_add_f32 v39, v39, v{39+8*w}")
round_bf16(32)
round_bf16(39)
i("s_waitcnt vmcnt(0)")
i("v_lshlrev_b32 v6, 16, v6")
i("v_add_f32 v6, v6, v32")
round_bf16(6)
i("v_add_f32 v6, v6, v39")
i("v_cvt_pk_bf16_f32 v6, v6, v6")
i("buffer_store_short v6, v3, s[20:23], s28 offen")
e("L_fdone2:")
if STAMP:
    i("s_mov_b64 exec, -1")
    i("s_memrealtime s[34:35]")
    i("s_waitcnt lgkmcnt(0)")
    i("s_lshl_b32 s36, s2, 4")
    i("s_add_u32 s36, s36, %d" % (0x100000 + 256*512))
    i("s_mov_b32 s14, 0x200000")
    i("v_mov_b32 v60, 0")
    i("v_mov_b32 v62, s32")
    i("v_mov_b32 v63, s34")
    i("buffer_store_dwordx2 v[62:63], v60, s[12:15], s36 offen")
e("L_fdone:")
i("s_endpgm")

e(""".section .rodata,"a"
.p2align 6
.amdhsa_kernel %s
  .amdhsa_next_free_vgpr 248
  .amdhsa_next_free_sgpr 100
  .amdhsa_accum_offset 248
  .amdhsa_group_segment_fixed_size 0
  .amdhsa_kernarg_size 96
  .amdhsa_user_sgpr_count 2
  .amdhsa_user_sgpr_kernarg_segment_ptr 1
  .amdhsa_system_sgpr_workgroup_id_x 1
.end_amdhsa_kernel
.p2align 6
.amdhsa_kernel fin_kernel
  .amdhsa_next_free_vgpr 64
  .amdhsa_next_free_sgpr 40
  .amdhsa_accum_offset 64
  .amdhsa_group_segment_fixed_size 0
  .amdhsa_kernarg_size 96
  .amdhsa_user_sgpr_count 2
  .amdhsa_user_sgpr_kernarg_segment_ptr 1
  .amdhsa_system_sgpr_workgroup_id_x 1
.end_amdhsa_kernel""" % KNAME)

path = sys.argv[1] if len(sys.argv) > 1 else "parallel_sum__mha_block_cached__geglu_ffn__decode.s"
open(path, "w").write("\n".join(out) + "\n")
print("wrote", path, len(out), "lines")
```
